```python
import torch

def _softmax(x, axis=-1):
    return torch.softmax(x, dim=axis)
def _gelu(x):
    return torch.nn.functional.gelu(x, approximate="tanh")
def _silu(x):
    return torch.nn.functional.silu(x)
def _sigmoid(x):
    return torch.sigmoid(x)
def _layernorm(x, axis=-1, eps=1e-5):
    m = x.mean(dim=axis, keepdim=True)
    v = x.var(dim=axis, keepdim=True, unbiased=False)
    return (x - m) / torch.sqrt(v + eps)
def _scatter_add(tgt, idx, src, axis=0):
    return tgt.clone().index_add_(axis, idx, src)
def _segment_sum(src, seg, n):
    out = torch.zeros((n,) + src.shape[1:], dtype=src.dtype)
    return out.index_add_(0, seg, src)
def _pad(x, pw):
    flat = tuple(v for pair in reversed(pw) for v in pair)
    return torch.nn.functional.pad(x, flat)

kernel_name = 'parallel_sum__linear_kernel_hedgehog__mixer_s_mlp__prompt'

def setup_inputs():

    _w = (lambda a: (lambda t: t.to(torch.bfloat16) if t.is_floating_point() else t)(torch.as_tensor(a)))
    def _A_setup():
        B, S, D, H = 1, 2048, 576, 32
        Dh = D // H
        return {
            "x": _w((lambda *s: torch.randn(*s, dtype=torch.bfloat16) * 0.05)(B, S, D)),
            "wqkv": _w((lambda *s: torch.randn(*s, dtype=torch.bfloat16) * 0.8)(D, 3 * D)),
            "w_phi": _w((lambda *s: torch.randn(*s, dtype=torch.bfloat16) * 0.8)(H, Dh, Dh) * (Dh ** -0.5)),
            "wo": _w((lambda *s: torch.randn(*s, dtype=torch.bfloat16) * 0.1)(D, D)),
        }
    _A_in = _A_setup()

    def _B_setup():
        B, S, D, F = 1, 2048, 576, 4608
        return {
            "x":  _w((lambda *s: torch.randn(*s, dtype=torch.bfloat16) * 0.05)(B, S, D)),
            "w1": _w((lambda *s: torch.randn(*s, dtype=torch.bfloat16) * 3.2)(D, D) * (D ** -0.5)),
            "w2": _w((lambda *s: torch.randn(*s, dtype=torch.bfloat16) * 3.2)(D, D) * (D ** -0.5)),
            "w3": _w((lambda *s: torch.randn(*s, dtype=torch.bfloat16) * 3.2)(D, F) * (D ** -0.5)),
            "w4": _w((lambda *s: torch.randn(*s, dtype=torch.bfloat16) * 3.2)(F, D) * (F ** -0.5)),
        }
    _B_in = _B_setup()

    return {
        "A_x": _A_in["x"],
        "A_wqkv": _A_in["wqkv"],
        "A_w_phi": _A_in["w_phi"],
        "A_wo": _A_in["wo"],
        "B_x": _B_in["x"],
        "B_w1": _B_in["w1"],
        "B_w2": _B_in["w2"],
        "B_w3": _B_in["w3"],
        "B_w4": _B_in["w4"],
    }

def reference(A_x, A_wqkv, A_w_phi, A_wo, B_x, B_w1, B_w2, B_w3, B_w4):
    def _A_ref(x, wqkv, w_phi, wo):
        B, S, D = x.shape
        H = 32; Dh = D // H
        qkv = (lambda x, *d: x.permute(*d))((x @ wqkv).reshape(B, S, 3, H, Dh), 2, 0, 3, 1, 4)
        q, k, v = qkv[0], qkv[1], qkv[2]
        pq = torch.einsum("bhsd,hdf->bhsf", q, w_phi)
        pk = torch.einsum("bhsd,hdf->bhsf", k, w_phi)
        phi_q = torch.concatenate([_softmax(pq, axis=-1), _softmax(-pq, axis=-1)], axis=-1)
        phi_k = torch.concatenate([_softmax(pk, axis=-1), _softmax(-pk, axis=-1)], axis=-1)
        kv = torch.einsum("bhsf,bhsd->bhfd", phi_k, v)
        z  = torch.einsum("bhsf->bhf", phi_k)
        num = torch.einsum("bhqf,bhfd->bhqd", phi_q, kv)
        den = torch.einsum("bhqf,bhf->bhq", phi_q, z)[..., None] + 1e-6
        o = num / den
        return (lambda x, *d: x.permute(*d))(o, 0, 2, 1, 3).reshape(B, S, D) @ wo

    def _B_ref(x, w1, w2, w3, w4):
        B, S, D = x.shape
        h = _gelu(_layernorm(x, axis=-1) @ w1)
        c = D // 4
        g0 = _pad(h[:, :, 0*c:1*c], ((0, 0), (1, 0), (0, 0)))[:, :S, :]
        g1 = _pad(h[:, :, 1*c:2*c], ((0, 0), (0, 1), (0, 0)))[:, 1:, :]
        g2 = _pad(h[:, :, 2*c:3*c], ((0, 0), (2, 0), (0, 0)))[:, :S, :]
        g3 = _pad(h[:, :, 3*c:   ], ((0, 0), (0, 2), (0, 0)))[:, 2:, :]
        hs = torch.concatenate([g0, g1, g2, g3], axis=-1) @ w2
        x1 = x + hs
        h2 = _gelu(_layernorm(x1, axis=-1) @ w3) @ w4
        return x1 + h2

    x = A_x
    xn = _layernorm(x, axis=-1)
    return x + _A_ref(xn, A_wqkv, A_w_phi, A_wo) + _B_ref(xn, B_w1, B_w2, B_w3, B_w4)
```

```python
import struct
def f2u(x): return struct.unpack('<I', struct.pack('<f', x))[0]
def vr(b, n=1): return f"v{b}" if n == 1 else f"v[{b}:{b+n-1}]"
def sr(b, n=1): return f"s{b}" if n == 1 else f"s[{b}:{b+n-1}]"

class Asm:
    def __init__(self):
        self.L = []
        self.lg = []
        self.vm = []
        self.mute = False
        self.nlab = 0
    def __call__(self, s):
        if not self.mute:
            for x in s.split('\n'):
                x = x.strip()
                if x: self.L.append(x if x.endswith(':') else '    ' + x)
    def c(self, s):
        if not self.mute: self.L.append('    ; ' + s)
    def label(self, base):
        self.nlab += 1
        return f"L_{base}_{self.nlab}"
    def ds(self, s, tag):
        self(s); self.lg.append(tag)
    def vmem(self, s, tag):
        self(s); self.vm.append(tag)
    def _need(self, q, pred):
        last = -1
        for i, t in enumerate(q):
            if pred(t): last = i
        if last < 0: return None
        return len(q) - 1 - last
    def wait(self, lg=None, vm=None):
        parts = []
        if vm is not None:
            n = 0 if vm == 'all' else self._need(self.vm, vm)
            if n is not None and (vm != 'all' or True):
                n = min(n, 63)
                parts.append(f"vmcnt({n})")
                self.vm = self.vm[len(self.vm)-n:] if n else []
        if lg is not None:
            n = 0 if lg == 'all' else self._need(self.lg, lg)
            if n is not None:
                n = min(n, 15)
                parts.append(f"lgkmcnt({n})")
                self.lg = self.lg[len(self.lg)-n:] if n else []
        if parts: self("s_waitcnt " + " ".join(parts))
    def text(self): return "\n".join(self.L) + "\n"

def kernel_desc(name, vgpr=256, sgpr=102):
    acc = (vgpr + 3)//4*4
    return f""".p2align 6
.amdhsa_kernel {name}
  .amdhsa_next_free_vgpr {vgpr}
  .amdhsa_next_free_sgpr {sgpr}
  .amdhsa_accum_offset {acc}
  .amdhsa_group_segment_fixed_size 0
  .amdhsa_kernarg_size 96
  .amdhsa_user_sgpr_count 2
  .amdhsa_user_sgpr_kernarg_segment_ptr 1
  .amdhsa_system_sgpr_workgroup_id_x 1
.end_amdhsa_kernel
"""

import re
_REG = re.compile(r'^-?\|?(?:abs\()?([vsa])(?:(\d+)|\[(\d+):(\d+)\])\)?\|?$')
def _regs(op):
    op = op.strip()
    if op in ('vcc', 'vcc_lo', 'vcc_hi'): return {('s', 'vcc')}
    if op == 'm0': return {('s', 'm0')}
    if op == 'exec': return {('s', 'exec')}
    m = _REG.match(op)
    if not m: return set()
    k = m.group(1)
    if m.group(2) is not None: return {(k, int(m.group(2)))}
    return {(k, i) for i in range(int(m.group(3)), int(m.group(4))+1)}
TRANS = ('v_exp_f32', 'v_log_f32', 'v_rcp_f32', 'v_rsq_f32', 'v_sqrt_f32')
class Ins:
    def __init__(s, text):
        s.text = text
        t = text.split(';')[0].strip()
        s.op, _, rest = t.partition(' ')
        toks = [x.strip() for x in rest.split(',')] if rest else []
        mods = ''
        if toks:
            last = toks[-1].split(None, 1)
            toks[-1] = last[0]; mods = last[1] if len(last) > 1 else ''
        s.mods = mods
        op = s.op; R = [_regs(x) for x in toks]
        U = lambda l: set().union(*l) if l else set()
        s.w = set(); s.r = set(); s.cls = 'other'; s.ws = 1; s.C = set(); s.AB = set(); s.data = set()
        if op == 's_nop': s.ws = int(toks[0], 0) + 1
        elif op.startswith('v_mfma'):
            s.cls = 'mfma'; s.w = R[0]; s.AB = R[1] | R[2]; s.C = R[3]; s.r = s.AB | s.C
            assert '16x16x' in op, op
        elif op.startswith('v_'):
            s.cls = 'valu'; s.w = set(R[0]); s.r = U(R[1:])
            if op.startswith('v_permlane'): s.w = R[0] | R[1]; s.r = R[0] | R[1]
            if op.startswith(('v_fmac', 'v_dot2c', 'v_writelane')): s.r |= R[0]
            if '_co_' in op: s.w |= R[1]
            if op.startswith('v_dot2c'): s.AB = U(R[1:])
            if op.startswith('v_dot2_'): s.AB = R[1] | R[2]
        elif op.startswith('ds_'):
            s.cls = 'ds'
            if 'read' in op or 'rtn' in op or 'permute' in op: s.w = R[0]; s.r = U(R[1:])
            else: s.r = U(R)
        elif op.startswith(('buffer_', 'global_')):
            s.cls = 'vmem'
            if 'lds' in mods.split(): s.r = U(R) | {('s', 'm0')}
            elif '_load' in op: s.w = R[0]; s.r = U(R[1:])
            else:
                s.r = U(R)
                if op.endswith(('x4', 'x3')): s.data = R[0] if op.startswith('buffer_') else R[1]
        elif op.startswith('s_') and toks and not op.startswith(('s_cmp', 's_waitcnt', 's_cbranch', 's_branch', 's_bitcmp', 's_setprio', 's_sleep')):
            s.cls = 'salu'; s.w = R[0]; s.r = U(R[1:])
        elif op.startswith(('s_cmp', 's_bitcmp')):
            s.cls = 'salu'; s.r = U(R)
        s.trans = op.replace('_e32', '').replace('_e64', '') in TRANS
        s.dot = op.startswith('v_dot')
        s.vw = {x for x in s.w if x[0] != 's'}; s.sw = {x for x in s.w if x[0] == 's'}
def _need(p, c):
    n = 0
    if p.cls == 'valu':
        if p.vw & c.r or (p.dot and p.vw & c.w):
            if p.dot:
                if c.op == p.op: n = max(n, 3 if p.vw & c.AB else 0)
                else: n = max(n, 3)
            if c.cls == 'mfma': n = max(n, 2)
            if c.op.startswith('v_permlane') or 'dpp' in c.op: n = max(n, 2)
            if c.op.startswith(('v_readfirstlane', 'v_readlane')): n = max(n, 1)
            if p.trans and c.cls in ('valu', 'mfma') and not c.trans: n = max(n, 1)
        if p.sw & c.r:
            if c.cls == 'valu': n = max(n, 4 if c.op.startswith(('v_readlane', 'v_writelane')) else 2)
            if c.cls == 'vmem': n = max(n, 5)
            if c.cls == 'salu': n = max(n, 1)
    if p.cls == 'mfma':
        if c.cls == 'mfma':
            if p.w & c.AB: n = max(n, 8)
            if p.w & c.C and p.w != c.C: n = max(n, 6)
        elif p.w & (c.r | c.w): n = max(n, 8)
        if c.cls == 'valu' and p.C & c.w: n = max(n, 3)
    if p.cls == 'salu' and ('s', 'm0') in p.w and ('s', 'm0') in c.r and c.cls == 'vmem': n = max(n, 1)
    if p.data & c.w: n = max(n, 2 if c.cls in ('valu', 'mfma') else 1)
    return n
def fix_hazards(lines):
    out = []; hist = [[]]; saved = {}; nadd = 0
    for ln in lines:
        t = ln.strip()
        if not t or t.startswith((';', '.')): out.append(ln); continue
        if t.endswith(':'):
            hist = hist + saved.pop(t[:-1], []); out.append(ln); continue
        c = Ins(t); pad = 0
        if not hist: hist = [[]]
        for h in hist:
            d = 0
            for p in reversed(h):
                pad = max(pad, _need(p, c) - d); d += p.ws
                if d >= 8: break
        if pad > 0:
            nop = Ins(f"s_nop {pad-1}"); out.append(f"    s_nop {pad-1}"); nadd += 1
            hist = [h + [nop] for h in hist]
        out.append(ln)
        hist = [(h + [c])[-10:] for h in hist]
        if len(hist) > 1 and all([id(x) for x in h[-9:]] == [id(x) for x in hist[0][-9:]] for h in hist): hist = hist[:1]
        if c.op.startswith('s_cbranch') or c.op == 's_branch':
            saved.setdefault(t.split()[1], []).extend([list(h) for h in hist])
        if c.op in ('s_branch', 's_endpgm'): hist = []
        if not hist and False: pass
    return out, nadd
```

```python
import numpy as np
CNT=0; KV=0x10000; WQ=0x40000; HS=0x300000; X1=0x580000; ST=0x800000; WM=0x900000; PART=0x1500000; TS=0x3000000
C_FOLD=0; C_KV=32; C_W3=64; C_W4=72; C_PART=80; C_H=192; C_X1=320; NCNT=448
R1=0; R2=73728; EX=147456; SCR=157696; LC=162816; LDS_SIZE=163840
def rho(pi): return 9*(pi>>3)+(pi&7) if pi<64 else 9*(pi-64)+8
def colmap():
    m=np.zeros((18,4,8),dtype=np.int64)
    for s in range(18):
        for g in range(4):
            for jj in range(8): m[s,g,jj]=8*rho(4*s+2*(jj>>2)+(g>>1))+4*(g&1)+(jj&3)
    return m
class Plan:
    def __init__(s, g3=(5,4), g4=(4,3,2)):
        s.passes=[]; grp=0; P=0
        for n in g3: s.passes.append((grp,3,list(range(P,P+n)))); P+=n; grp^=1
        assert P==9; P=0
        for n in g4: s.passes.append((grp,4,list(range(P,P+n)))); P+=n; grp^=1
        assert P==9
        s.hsteps=[]; s.hw=[]
        for grp,g,Ps in s.passes:
            if g!=3: continue
            w=[]
            for k in range(0,len(Ps)-1,2):
                w.append(('pair',k,len(s.hsteps)))
                for t in range(4): s.hsteps.append(((Ps[k],t),(Ps[k+1],t)))
            if len(Ps)&1:
                w.append(('single',len(Ps)-1,len(s.hsteps)))
                for t in (0,2): s.hsteps.append(((Ps[-1],t),(Ps[-1],t+1)))
            s.hw.append(w)
        assert len(s.hsteps)==18
        s.nearly = s.hw[-1][0][2]
        s.k4=[('h',k) for k in range(s.nearly)]+[('o',0),('o',1),('x',0)]+[('h',k) for k in range(s.nearly,18)]
        s.stream=[[],[]]
        for pi,(grp,g,Ps) in enumerate(s.passes):
            if g==3:
                for k in range(18):
                    for P in Ps: s.stream[grp].append((pi,'w3',k,(P,)))
            else:
                for kind,k in s.k4:
                    if kind=='x':
                        for q in range(0,len(Ps),2): s.stream[grp].append((pi,'x',0,tuple(Ps[q:q+2])))
                    else:
                        for P in Ps: s.stream[grp].append((pi,kind,k,(P,)))
        s.S=[1024*len(s.stream[0]),1024*len(s.stream[1])]
        s.slice=4*(s.S[0]+s.S[1])
    def tasks(s):
        out=[]
        for grp in range(2):
            for n,(pi,kind,k,Ps) in enumerate(s.stream[grp]):
                dest=(4*s.S[0] if grp else 0)+1024*n; ts=s.S[grp]; P=Ps[0]
                if kind=='w3':
                    p=9216
                    if k<16: base,al,be,ga,de=72*(k>>1)+32*(k&1),4,8,1,16
                    else: base,al,be,ga,de=288*(k-16)+64,4,72,1,144
                    out.append((0,base*p+128*P,1152,al*p,be*p,ga*p,de*p,dest,ts))
                elif kind=='h':
                    p=1152; (P0,t0),(P1,t1)=s.hsteps[k]
                    out.append((1,(64*P0+t0)*p+128*P,576*p,16*p,32*p,4*p,(64*(P1-P0)+t1-t0)*p,dest,ts))
                elif kind=='o':
                    p=1152
                    out.append((2,36*k*p+128*P,72*p,4*p,8*p,p,18*p,dest,ts))
                else:
                    p=1152
                    out.append((2,16*p+128*P,72*p,p,0,18*p,128*(Ps[-1]-P),dest,ts))
        return out
    def table(s):
        T=s.tasks(); w3=[x for x in T if x[0]==0]; rest=[x for x in T if x[0]!=0]
        tab=[[[None]*4 for t in range(4)] for i in range(32)]
        for i in range(32):
            for t in range(4): tab[i][t][0]=w3.pop()
        last=rest[0]
        for sl in (1,2):
            for i in range(18,32):
                for t in range(4): tab[i][t][sl]=w3.pop() if w3 else rest.pop()
        assert not w3
        for i in range(32):
            for t in range(4): tab[i][t][3]=rest.pop() if rest else last
        assert not rest
        for i in range(18):
            for t in range(4): tab[i][t][1]=tab[i][t][2]=tab[i][t][0]
        return tab
def ij(wg,mode):
    x=wg&7; t=wg>>3
    j=((x&((8>>mode)-1))<<mode)+(t&((1<<mode)-1)); i=((x>>(3-mode))<<(5-mode))+(t>>mode)
    return i,j
```

```python
import sys
from asmlib import *
from layout import *
C0 = -2*0.7978845608028654*1.4426950408889634
C1 = C0*0.044715
LOG2E = 1.4426950408889634
BIG = 0x40000000; JUNK = 0x4000000
KNAME = "parallel_sum__linear_kernel_hedgehog__mixer_s_mlp__prompt_kernel"

def gen(name=KNAME, mode=1, D=16, DB=8, g3=(5,4), g4=(4,3,2), stamps=0, spoll=0, pace=1, pk1=1, pk2=0, stop=99):
    a = Asm(); PL = Plan(g3, g4)
    WS, SX, SA_, SB_ = 4, 8, 12, 16
    sW, sT, sI, sJ, sOff, sStO, sTo, sTT = 20, 21, 22, 23, 24, 25, 26, 27
    sMask, sLo, sHi = 28, 29, 30
    t0, t1, t2, t3, t4 = 31, 32, 33, 34, 35
    pX, pQKV, pPHI, pWO, pW1, pW2, pW3, pW4, pOUT, pDBG, pWS = 36, 38, 40, 42, 46, 48, 50, 52, 54, 56, 58
    sTab = 60
    vL, vM, vG, vL16, vB2, vB3, vO8, vHw, vHw2, vSt, vSt2, vC1, vOne, vLC, vStamp = 0, 1, 2, 3, 4, 5, 6, 7, 8, 9, 10, 11, 12, 13, 15
    T = 16; Bb = 64; A = 96; ACC = 176; XF = 176
    end = "L_end"
    def srd(q, p, size): a(f"s_mov_b32 s{q}, s{p}\ns_and_b32 s{q+1}, s{p+1}, 0xffff\ns_mov_b32 s{q+2}, {size}\ns_mov_b32 s{q+3}, 0x20000")
    def S(q): return sr(q, 4)
    def stamp(k):
        if stamps:
            a("s_memrealtime s[100:101]\ns_waitcnt lgkmcnt(0)"); a.lg = []
            a(f"v_writelane_b32 v{vStamp}, s100, {k}")
    def mfma(d, x, y, c, k=32):
        n = 4 if k == 32 else 2
        a(f"v_mfma_f32_16x16x{k}_bf16 {vr(d,4)}, {vr(x,n)}, {vr(y,n)}, {'0' if c is None else vr(c,4)}")
    def cvt(d, x, y): a(f"v_cvt_pk_bf16_f32 v{d}, v{x}, v{y}")
    def cnt_off(dst, base, idx, mul=1, add=0):
        if mul != 1: a(f"s_mul_i32 s{dst}, s{idx}, {mul*128}")
        else: a(f"s_lshl_b32 s{dst}, s{idx}, 7")
        a(f"s_add_u32 s{dst}, s{dst}, {CNT+(base+add)*128}")
    def signal(so):
        a("s_mov_b64 exec, 1")
        a.vmem(f"buffer_atomic_add v{vOne}, off, {S(WS)}, s{so}", 'sig')
        a("s_mov_b64 exec, -1")
    def poll(so, target, dbg=False):
        lp, dn = a.label('poll'), a.label('pdone')
        a(f"s_mov_b32 s{sTo}, 0\n{lp}:")
        if dbg: a(f"buffer_load_dword v14, off, {S(SA_)}, 0 sc1")
        else: a(f"buffer_load_dword v14, off, {S(WS)}, s{so} sc1")
        a("s_waitcnt vmcnt(0)\nv_readfirstlane_b32 s3, v14"); a.vm = []
        a(f"s_cmp_ge_u32 s3, {target}\ns_cbranch_scc1 {dn}")
        a(f"s_add_u32 s{sTo}, s{sTo}, 1\ns_cmp_lt_u32 s{sTo}, 20000\ns_cbranch_scc1 {lp}\n{dn}:")
    def lds_signal(k):
        a("s_mov_b64 exec, 1")
        a.ds(f"ds_add_u32 v{vLC}, v{vOne} offset:{4*k}", 'sig')
        a("s_mov_b64 exec, -1")
    def lds_wait(k, target=4, sleep=0):
        lp, dn = a.label('lw'), a.label('lwdone')
        a(f"s_mov_b32 s{sTo}, 0\n{lp}:")
        a(f"ds_read_b32 v14, v{vLC} offset:{4*k}\ns_waitcnt lgkmcnt(0)\nv_readfirstlane_b32 s3, v14"); a.lg = []
        a(f"s_cmp_ge_u32 s3, {target}\ns_cbranch_scc1 {dn}")
        a(f"s_add_u32 s{sTo}, s{sTo}, 1\ns_cmp_lt_u32 s{sTo}, 200000\ns_cbranch_scc1 {lp}\n{dn}:")
    def allred4(v, op, post=None):
        for q, o in zip(v, op): a(f"v_permlane16_swap_b32 v{q[0]}, v{q[1]}\nv_permlane16_swap_b32 v{q[2]}, v{q[3]}")
        for q, o in zip(v, op): a(f"{o} v{q[0]}, v{q[0]}, v{q[1]}\n{o} v{q[2]}, v{q[2]}, v{q[3]}")
        for q, o in zip(v, op): a(f"v_permlane32_swap_b32 v{q[0]}, v{q[2]}")
        for q, o in zip(v, op): a(f"{o} v{q[0]}, v{q[0]}, v{q[2]}")
        if post:
            for k, q in enumerate(v): post(k, q[0])
        for q in v: a(f"v_mov_b32 v{q[2]}, v{q[0]}")
        for q in v: a(f"v_permlane32_swap_b32 v{q[0]}, v{q[2]}")
        for q in v: a(f"v_mov_b32 v{q[1]}, v{q[0]}\nv_mov_b32 v{q[3]}, v{q[2]}")
        for q in v: a(f"v_permlane16_swap_b32 v{q[0]}, v{q[1]}\nv_permlane16_swap_b32 v{q[2]}, v{q[3]}")
    def gelu_quad(x, P, scale=None, tb=T):
        t = [tb+i for i in range(4)]
        if scale is not None:
            for i in range(4): a(f"v_mul_f32 v{x+i}, v{scale}, v{x+i}")
        for i in range(4): a(f"v_mul_f32 v{t[i]}, v{x+i}, v{x+i}")
        for i in range(4): a(f"v_fmaak_f32 v{t[i]}, v{t[i]}, v{vC1}, {f2u(C0):#x}")
        for i in range(4): a(f"v_mul_f32 v{t[i]}, v{t[i]}, v{x+i}")
        for i in range(4): a(f"v_exp_f32 v{t[i]}, v{t[i]}")
        for i in range(4): a(f"v_add_f32 v{t[i]}, 1.0, v{t[i]}")
        for i in range(4): a(f"v_rcp_f32 v{t[i]}, v{t[i]}")
        for i in range(4): a(f"v_mul_f32 v{t[i]}, v{t[i]}, v{x+i}")
        cvt(P, t[0], t[1]); cvt(P+1, t[2], t[3])
    def normalize(r, vR, vNB, pk):
        for d in range(4): a(f"v_lshlrev_b32 v{T+2*d}, 16, v{r+d}\nv_and_b32 v{T+2*d+1}, s{sMask}, v{r+d}")
        for d in range(4):
            if pk: a(f"v_pk_fma_f32 {vr(T+2*d,2)}, {vr(T+2*d,2)}, {vr(vR,2)}, {vr(vNB,2)}")
            else: a(f"v_fma_f32 v{T+2*d}, v{T+2*d}, v{vR}, v{vNB}\nv_fma_f32 v{T+2*d+1}, v{T+2*d+1}, v{vR}, v{vNB}")
        for d in range(4): cvt(r+d, T+2*d, T+2*d+1)
    def ln_stats(vS, vQ, vR, vNB, vVar):
        a(f"v_mul_f32 v{vS}, {f2u(1/576):#x}, v{vS}\nv_mul_f32 v{vQ}, {f2u(1/576):#x}, v{vQ}")
        a(f"v_fma_f32 v{vVar}, -v{vS}, v{vS}, v{vQ}\nv_max_f32 v{vVar}, 0, v{vVar}")
        a(f"v_add_f32 v{vR}, {f2u(1e-5):#x}, v{vVar}\nv_rsq_f32 v{vR}, v{vR}")
        a(f"v_mul_f32 v{vNB}, v{vS}, v{vR}\nv_mov_b32 v{vR+1}, v{vR}\nv_sub_f32 v{vNB}, 0, v{vNB}\nv_mov_b32 v{vNB+1}, v{vNB}")

    a(f".globl {name}\n.p2align 8\n.type {name},@function\n{name}:")
    a(f"s_cmp_ge_u32 s2, 256\ns_cbranch_scc1 {end}")
    a("s_load_dwordx16 s[36:51], s[0:1], 0\ns_load_dwordx8 s[52:59], s[0:1], 64")
    a(f"v_lshrrev_b32 v1, 6, v0\nv_and_b32 v{vL}, 63, v0\nv_readfirstlane_b32 s{sW}, v1")
    a(f"s_and_b32 s{t0}, s2, 7\ns_lshr_b32 s{t1}, s2, 3")
    a(f"s_and_b32 s{sJ}, s{t0}, {(8>>mode)-1}\ns_lshl_b32 s{sJ}, s{sJ}, {mode}\ns_and_b32 s{t2}, s{t1}, {(1<<mode)-1}\ns_add_u32 s{sJ}, s{sJ}, s{t2}")
    a(f"s_lshr_b32 s{sI}, s{t0}, {3-mode}\ns_lshl_b32 s{sI}, s{sI}, {5-mode}\ns_lshr_b32 s{t2}, s{t1}, {mode}\ns_add_u32 s{sI}, s{sI}, s{t2}")
    a(f"s_and_b32 s{sT}, s{sW}, 3")
    a(f"v_and_b32 v{vM}, 15, v{vL}\nv_lshrrev_b32 v{vG}, 4, v{vL}\nv_lshlrev_b32 v{vL16}, 4, v{vL}")
    a(f"v_mov_b32 v{vOne}, 1\nv_mov_b32 v{vLC}, {LC}")
    if stamps: a(f"v_mov_b32 v{vStamp}, 0")
    a(f"s_mov_b32 s{sMask}, 0xffff0000\ns_mov_b32 s{sLo}, 0x3f80\ns_mov_b32 s{sHi}, 0x3f800000")
    a(f"s_cmp_ge_u32 s{sW}, 4\ns_cbranch_scc1 L_grp_b")

    def mlp_setup():
        a(f"v_add_u32 v{vB2}, 65536, v{vL16}\nv_add_u32 v{vB3}, 131072, v{vL16}")
        a(f"v_lshlrev_b32 v{vO8}, 3, v{vL}\nv_add_u32 v{vO8}, {EX+8192}, v{vO8}")
        a(f"s_lshl_b32 s{t0}, s{sT}, 12\ns_add_u32 s{t0}, s{t0}, {R1}\nv_add_u32 v{vHw}, s{t0}, v{vL16}")
        a(f"s_lshr_b32 s{t0}, s{sT}, 1\ns_lshl_b32 s{t0}, s{t0}, 12\ns_and_b32 s{t1}, s{sT}, 1\ns_lshl_b32 s{t1}, s{t1}, 3\ns_add_u32 s{t0}, s{t0}, s{t1}\ns_add_u32 s{t0}, s{t0}, {R1+32768}\nv_add_u32 v{vHw2}, s{t0}, v{vL16}")
        a(f"v_lshrrev_b32 v{T}, 2, v{vM}\nv_lshlrev_b32 v{T}, 13, v{T}\nv_lshl_add_u32 v{T}, v{vG}, 6, v{T}\nv_and_b32 v{T+1}, 3, v{vL}\nv_lshl_add_u32 v{T}, v{T+1}, 4, v{T}")
        a(f"s_lshl_b32 s{t0}, s{sJ}, 10\ns_lshl_b32 s{t1}, s{sT}, 8\ns_add_u32 s{t0}, s{t0}, s{t1}")
        a(f"s_mul_i32 s{t1}, s{sI}, {9*65536}\ns_add_u32 s{t0}, s{t0}, s{t1}\ns_add_u32 s{t0}, s{t0}, {PART}\nv_add_u32 v{vSt}, s{t0}, v{T}\nv_add_u32 v{vSt2}, 32768, v{vSt}")
        a(f"v_mov_b32 v{vC1}, {f2u(C1):#x}")

    class Stream:
        def __init__(s, n, depth): s.n = n; s.nl = 0; s.nu = 0; s.base = 0; s.D = depth; s.hook = {}
        def load(s):
            if s.nl >= s.n: return
            if s.nl in s.hook: s.hook.pop(s.nl)()
            off = s.nl*1024
            if off - s.base >= 4096: a(f"s_add_u32 s{sOff}, s{sOff}, {off-s.base}"); s.base = off
            a.vmem(f"buffer_load_dwordx4 {vr(A+4*(s.nl%s.D),4)}, v{vL16}, {S(WS)}, s{sOff} offen offset:{off-s.base} sc1", ('A', s.nl))
            s.nl += 1
    def rdB(ks, si):
        kind, k = ks[si]
        for t in range(4):
            r = Bb + 16*(si & 1) + 4*t
            if kind == 'x': a.ds(f"ds_read_b64 {vr(r,2)}, v{vO8} offset:{t*512}", ('B', si)); continue
            o = {'X': R2+t*18432+k*1024, 'N': R1+t*18432+k*1024, 'h': R1+k*4096+t*1024, 'o': EX+k*4096+t*1024}[kind]
            a.ds(f"ds_read_b128 {vr(r,4)}, v{[vL16,vB2,vB3][o>>16]} offset:{o&65535}", ('B', si))
    def mpass(st, ks, n, bars=(), swapped=(), prio=1):
        if prio: a("s_setprio 1")
        for si, (kind, k) in enumerate(ks):
            for p in range(n):
                u = st.nu
                a.wait(vm=lambda t: t == ('A', u), lg=(lambda t: t == ('B', si)) if p == 0 else None)
                r = A + 4*(u % st.D)
                for t in range(4):
                    d = ACC+16*p+4*t; c = None if si == 0 else d; b = Bb + 16*(si & 1) + 4*t
                    if kind == 'x': mfma(d, r+2*(p & 1), b, c, 16)
                    elif p in swapped: mfma(d, b, r, c)
                    else: mfma(d, r, b, c)
                    if t == 0 and p == 0 and si+1 < len(ks):
                        if si+1 in bars: a("s_barrier")
                        rdB(ks, si+1)
                if kind != 'x' or (p & 1) or p == n-1:
                    st.nu += 1; st.load()
        if prio: a("s_setprio 0")
    K3 = [('X', s) for s in range(18)]
    def h_write(w, bar):
        for kind, p0, step in w:
            for tt in range(4):
                if kind == 'pair':
                    P = T+8+4*(tt & 1)
                    gelu_quad(ACC+16*p0+4*tt, P); gelu_quad(ACC+16*(p0+1)+4*tt, P+2)
                    a.ds(f"ds_write_b128 v{vHw}, {vr(P,4)} offset:{step*4096+tt*1024}", 'w')
                else:
                    P = T+8+2*(tt & 1); gelu_quad(ACC+16*p0+4*tt, P)
                    o = step*4096+tt*1024-32768
                    if o < 0:
                        a(f"v_add_u32 v{T+16}, {o & 0xffffffff:#x}, v{vHw2}"); a.ds(f"ds_write_b64 v{T+16}, {vr(P,2)}", 'w')
                    else: a.ds(f"ds_write_b64 v{vHw2}, {vr(P,2)} offset:{o}", 'w')
            if bar: a.wait(lg='all'); a("s_barrier")
        a.wait(lg='all')
    def p_stores(Ps, ph, last):
        for p, P_ in enumerate(Ps):
            a(f"s_mov_b32 s{sStO}, {P_*65536}")
            for h in range(2):
                x = ACC+16*p+8*h; P = T+8*(p & 1)+4*h
                for i in range(4): cvt(P+i, x+2*i, x+2*i+1)
                a.vmem(f"buffer_store_dwordx4 {vr(P,4)}, v{vSt2 if h else vSt}, {S(WS)}, s{sStO} offen sc1", 'st')
                if pace >= 0 and not last:
                    a(f"s_waitcnt vmcnt({pace})"); a.vm = a.vm[len(a.vm)-pace:] if pace else []
        cnt_off(t0, C_PART, sI, 3, ph)
        a.wait(vm='all'); signal(t0)
    def reduce_task(Ps, ph):
        skip = a.label('rskip')
        if len(Ps) < 4: a(f"s_cmp_ge_u32 s{sT}, {len(Ps)}\ns_cbranch_scc1 {skip}")
        RL = 96; RX = 128; RS = 140; vA_, vB_, vC_ = T, T+1, T+2
        a(f"s_add_u32 s{t1}, s{sT}, {Ps[0]}")
        a(f"v_bfe_u32 v{T+4}, v{vL}, 2, 2\nv_lshrrev_b32 v{T+5}, 5, v{vL}\nv_lshl_add_u32 v{T+4}, v{T+4}, 1, v{T+5}\ns_lshl_b32 s{t2}, s{t1}, 3\nv_add_u32 v{T+4}, s{t2}, v{T+4}")
        a(f"s_and_b32 s{t2}, s{sJ}, 3\ns_lshl_b32 s{t2}, s{t2}, 2\nv_and_b32 v{T+5}, 3, v{vL}\nv_add_u32 v{T+5}, s{t2}, v{T+5}")
        a(f"s_lshr_b32 s{t2}, s{sJ}, 2\ns_lshl_b32 s{t2}, s{t2}, 1\ns_lshl2_add_u32 s{t2}, s{sI}, s{t2}\nv_and_b32 v{T+6}, 1, v{vG}\nv_add_u32 v{T+6}, s{t2}, v{T+6}")
        a(f"v_lshl_add_u32 v{T+7}, v{T+6}, 4, v{T+5}\nv_mul_u32_u24 v{T+7}, 1152, v{T+7}\nv_lshl_add_u32 v{vA_}, v{T+4}, 4, v{T+7}")
        a.vmem(f"buffer_load_dwordx4 {vr(RX,4)}, v{vA_}, {S(SX)}, 0 offen", 'rx')
        a(f"v_mul_u32_u24 v{T+7}, 57, v{T+4}\nv_lshrrev_b32 v{T+7}, 9, v{T+7}\nv_mul_u32_u24 v{T+8}, 9, v{T+7}\nv_sub_u32 v{T+8}, v{T+4}, v{T+8}")
        a(f"v_cmp_eq_u32 vcc, 8, v{T+8}\nv_sub_u32 v{T+9}, v{T+4}, v{T+7}\nv_add_u32 v{T+10}, 64, v{T+7}\nv_cndmask_b32 v{T+9}, v{T+9}, v{T+10}, vcc")
        a(f"v_and_b32 v{T+10}, 1, v{T+9}\nv_lshl_add_u32 v{T+10}, v{T+10}, 5, v{T+5}")
        a(f"v_bfe_u32 v{T+11}, v{T+9}, 1, 1")
        a(f"v_lshlrev_b32 v{T+12}, 4, v{T+10}\nv_lshl_add_u32 v{T+12}, v{T+11}, 3, v{T+12}")
        a(f"v_lshlrev_b32 v{T+13}, 3, v{T+10}\nv_lshl_add_u32 v{T+13}, v{T+11}, 9, v{T+13}")
        a(f"v_cndmask_b32 v{T+12}, v{T+12}, v{T+13}, vcc\nv_mov_b32 v{T+13}, 0x100\nv_mov_b32 v{T+14}, 0x80\nv_cndmask_b32 v{T+13}, v{T+13}, v{T+14}, vcc")
        a(f"v_lshrrev_b32 v{T+9}, 2, v{T+9}\nv_lshl_add_u32 v{T+12}, v{T+9}, 10, v{T+12}\nv_mul_u32_u24 v{T+6}, 18432, v{T+6}\nv_add_u32 v{vB_}, v{T+12}, v{T+6}\nv_add_u32 v{vC_}, v{vB_}, v{T+13}")
        a(f"s_mov_b32 s{t2}, {X1}")
        a.vmem(f"buffer_load_dwordx2 {vr(RX+4,2)}, v{vB_}, {S(WS)}, s{t2} offen sc1", 'rx')
        a.vmem(f"buffer_load_dwordx2 {vr(RX+6,2)}, v{vC_}, {S(WS)}, s{t2} offen sc1", 'rx')
        a(f"s_mul_i32 s{t2}, s{sI}, 9\ns_add_u32 s{t2}, s{t2}, s{t1}\ns_lshl_b32 s{t2}, s{t2}, 16\ns_lshl_b32 s{t3}, s{sJ}, 13\ns_add_u32 s{t2}, s{t2}, s{t3}\ns_add_u32 s{t2}, s{t2}, {PART}\ns_add_u32 s{t3}, s{t2}, 4096")
        for k in range(8): a(f"v_mov_b32 v{RS+k}, 0")
        srd(SA_, pOUT, 2359296)
        cnt_off(t0, C_PART, sI, 3, ph)
        poll(t0, 32)
        for src in range(8):
            a.vmem(f"buffer_load_dwordx4 {vr(RL+4*src,4)}, v{vL16}, {S(WS)}, s{t2 if src<4 else t3} offen offset:{(src&3)*1024} sc1", ('p', src))
        for src in range(8):
            a.wait(vm=lambda t: t == ('p', src))
            for d in range(4): a(f"v_dot2c_f32_bf16 v{RS+2*d}, s{sLo}, v{RL+4*src+d}\nv_dot2c_f32_bf16 v{RS+2*d+1}, s{sHi}, v{RL+4*src+d}")
        for i in range(4): a(f"v_permlane16_swap_b32 v{RS+i}, v{RS+4+i}")
        for x, y in ((0, 2), (1, 3), (4, 6), (5, 7)): a(f"v_permlane32_swap_b32 v{RS+x}, v{RS+y}")
        order = [0, 4, 2, 6, 1, 5, 3, 7]
        for base in (RX, RX+4):
            for d in range(4): a(f"v_dot2c_f32_bf16 v{RS+order[2*d]}, s{sLo}, v{base+d}\nv_dot2c_f32_bf16 v{RS+order[2*d+1]}, s{sHi}, v{base+d}")
        for d in range(4): cvt(RL+d, RS+order[2*d], RS+order[2*d+1])
        a.vmem(f"buffer_store_dwordx4 {vr(RL,4)}, v{vA_}, {S(SA_)}, 0 offen", 'o')
        a(f"{skip}:")
        a.vm = []
    def mlp(me, st):
        ps = PL.passes; ng3 = len(g3); pre = True
        for pi, (grp, g, Ps) in enumerate(ps):
            if grp == me:
                ks = K3 if g == 3 else PL.k4
                if not pre: rdB(ks, 0)
                bars = ()
                if pi == ng3: bars = tuple(PL.k4.index(('h', w[2])) for w in PL.hw[-1])
                mpass(st, ks, len(Ps), bars)
            else:
                if pi >= 1:
                    _, pg, pPs = ps[pi-1]
                    if pg == 3: h_write(PL.hw[pi-1], pi == ng3)
                    else: p_stores(pPs, pi-1-ng3, False)
                if pi+1 < len(ps):
                    pre = pi+1 != ng3
                    if pre and pi >= 1: rdB(K3 if ps[pi+1][1] == 3 else PL.k4, 0)
            if pi+1 < len(ps): a("s_barrier")
            stamp(20+pi)
        if ps[-1][0] == me:
            p_stores(ps[-1][2], len(g4)-1, True); stamp(30)
            reduce_task(ps[-1][2], len(g4)-1)
        else:
            for q in range(len(g4)-1): reduce_task(ps[ng3+q][2], q); stamp(30+q)
        stamp(33)
    def stream_base(me):
        a(f"s_mul_i32 s{sOff}, s{sJ}, {PL.slice}\ns_mul_i32 s{t0}, s{sT}, {PL.S[me]}\ns_add_u32 s{sOff}, s{sOff}, s{t0}\ns_add_u32 s{sOff}, s{sOff}, {WM+(4*PL.S[0] if me else 0)}")
    def w4_check(st, me):
        first = next(n for n, b in enumerate(PL.stream[me]) if b[1] != 'w3')
        def issue():
            cnt_off(t4, C_W4, sJ)
            a.vmem(f"buffer_load_dword v14, off, {S(WS)}, s{t4} sc1", 'chk')
        def check():
            ok = a.label('w4ok')
            a.wait(vm=lambda t: t == 'chk')
            a(f"v_readfirstlane_b32 s3, v14\ns_cmp_ge_u32 s3, 128\ns_cbranch_scc1 {ok}")
            sv = (list(a.vm), list(a.lg)); poll(t4, 128); a.vm, a.lg = sv
            a(f"{ok}:")
        st.hook[first-st.D-2] = issue; st.hook[first] = check

    vXe, vXo, vXw, vTr, vTx, vHs, vHx, vSig, vR, vNB, vR2 = 40, 41, 42, 44, 48, 49, 50, 51, 52, 54, 56
    vRes = 58
    RING = 96; AC5 = 124; SUM = 144; SQ = 148; ONES = 152; RES = 156
    a(f"s_lshl2_add_u32 s{sTT}, s{sI}, s{sT}")
    a(f"v_lshrrev_b32 v{T}, 3, v{vL}\nv_and_b32 v{T+1}, 7, v{vL}\nv_xor_b32 v{T+1}, v{T+1}, v{vG}\nv_mul_u32_u24 v{T}, 1152, v{T}\nv_lshl_add_u32 v{T+2}, v{T+1}, 4, v{T}")
    a(f"v_xor_b32 v{T+3}, 64, v{T+2}\nv_add_u32 v{T+3}, {8*1152}, v{T+3}")
    a(f"s_mul_i32 s{t0}, s{sTT}, 18432\ns_mul_i32 s{t1}, s{sT}, 18432")
    a("s_waitcnt lgkmcnt(0)")
    srd(SX, pX, 2359296); srd(WS, pWS, 0x10000000)
    stamp(0)
    a(f"s_or_b32 s{t2}, s2, s{sT}\ns_cmp_lg_u32 s{t2}, 0\ns_cbranch_scc1 L_nolead1")
    a(f"v_lshlrev_b32 v{T+4}, 7, v{vL}\nv_mov_b32 v{T+5}, 0")
    for n in range(NCNT//64): a(f"s_mov_b32 s{t3}, {CNT+n*8192}\nbuffer_store_dword v{T+5}, v{T+4}, {S(WS)}, s{t3} offen sc1")
    a("L_nolead1:")
    for n in range(18):
        a(f"s_add_u32 m0, s{t1}, {R1+n*1024-(n>>1)*128}")
        a.vmem(f"buffer_load_dwordx4 v{T+2+(n&1)}, {S(SX)}, s{t0} offen offset:{(n>>1)*128} lds", ('x', n//6))
    srd(SA_, pDBG, 256)
    a(f"s_cmp_lg_u32 s{t2}, 0\ns_cbranch_scc1 L_nolead2")
    a(f"s_waitcnt vmcnt(18)\ns_mov_b64 exec, 1\nbuffer_store_dword v{vOne}, off, {S(SA_)}, 0 sc1\ns_mov_b64 exec, -1")
    a("L_nolead2:")
    mlp_setup()
    a(f"v_lshrrev_b32 v{T}, 1, v{vM}\nv_xor_b32 v{T}, v{T}, v{vG}\nv_lshlrev_b32 v{T}, 4, v{T}\nv_lshl_add_u32 v{T}, v{vM}, 7, v{T}")
    a(f"s_mul_i32 s{t1}, s{sT}, 18432\ns_add_u32 s{t1}, s{t1}, {R1}\nv_add_u32 v{vXe}, s{t1}, v{T}\nv_xor_b32 v{vXo}, 64, v{vXe}\nv_add_u32 v{vXw}, s{t1}, v{vL16}")
    a(f"v_lshrrev_b32 v{T}, 2, v{vL}\nv_and_b32 v{T+1}, 3, v{vL}\nv_bfe_u32 v{T+2}, v{vL}, 3, 2")
    a(f"v_lshlrev_b32 v{T+3}, 7, v{T}\nv_lshl_add_u32 v{T+3}, v{T+1}, 3, v{T+3}\nv_add_u32 v{T+3}, {R2}, v{T+3}")
    for cq in range(4): a(f"v_xor_b32 v{T+4}, {cq}, v{T+2}\nv_lshl_add_u32 v{vTr+cq}, v{T+4}, 5, v{T+3}")
    a(f"v_and_b32 v{T+1}, 1, v{vL}\nv_lshlrev_b32 v{T+1}, 3, v{T+1}\nv_lshl_add_u32 v{T+1}, v{T}, 4, v{T+1}\nv_add_u32 v{vTx}, {EX}, v{T+1}")
    for k in range(4): a(f"v_mov_b32 v{ONES+k}, 0x3f803f80")
    a(f"v_lshlrev_b32 v{T}, 2, v{vG}\nv_sub_u32 v{T}, v{vM}, v{T}")
    for k in range(4): a(f"v_cmp_eq_u32 {sr(sTab+2*k,2)}, {k}, v{T}")
    a(f"s_mul_i32 s{t2}, s{sJ}, 18\nv_lshl_add_u32 v{T+5}, v{vM}, 4, s{t1}")
    for p in range(5):
        if p < 4: a(f"v_add_u32 v{T}, s{t2}, v{vG}")
        else: a(f"v_and_b32 v{T}, 1, v{vG}\nv_add_u32 v{T}, s{t2}, v{T}")
        a(f"v_add_u32 v{T}, {4*p}, v{T}")
        a(f"v_lshrrev_b32 v{T+1}, 1, v{T}\nv_and_b32 v{T}, 1, v{T}\nv_lshl_add_u32 v{T+1}, v{T+1}, 8, v{T+5}\nv_lshl_add_u32 v{vRes+p}, v{T}, 3, v{T+1}")
    a(f"s_lshr_b32 s{t2}, s{sJ}, 2\ns_add_u32 s{t2}, s{t2}, 1\ns_sub_u32 s{t3}, 0, s{t2}\ns_bitcmp1_b32 s{sJ}, 1\ns_cselect_b32 s{t2}, s{t3}, s{t2}\ns_cselect_b32 s{t3}, -1, 1")
    def pub_addr(sh):
        a(f"s_lshl_b32 s{t4}, s{sTT}, 4")
        if sh: a(f"s_add_u32 s{t4}, s{t4}, s{t2}")
        a(f"v_add_u32 v{T}, s{t4}, v{vM}")
        if sh: a(f"v_cmp_gt_u32 {sr(sTab+8,2)}, s{sTab+10}, v{T}\nv_and_b32 v{T}, 0x7ff, v{T}")
        a(f"v_lshrrev_b32 v{T+1}, 4, v{T}\nv_and_b32 v{T}, 15, v{T}\nv_mul_u32_u24 v{T+1}, 18432, v{T+1}\nv_lshl_add_u32 v{T}, v{vG}, 4, v{T}")
        a(f"s_lshl_b32 s{t4}, s{sJ}, 11\nv_lshl_add_u32 v{T+2}, v{T}, 4, v{T+1}\nv_add_u32 v{vHs}, s{t4}, v{T+2}")
        a(f"s_lshl_b32 s{t4}, s{sJ}, 8\ns_add_u32 s{t4}, s{t4}, 16384\nv_lshl_add_u32 v{T+2}, v{T}, 3, v{T+1}\nv_add_u32 v{T+2}, s{t4}, v{T+2}")
        a(f"v_cmp_gt_u32 vcc, 2, v{vG}\nv_mov_b32 v{T+3}, {BIG:#x}\nv_cndmask_b32 v{vHx}, v{T+3}, v{T+2}, vcc")
    a(f"s_mov_b32 s{sTab+10}, 2048")
    pub_addr(True)
    a(f"s_add_u32 s{t3}, s{t3}, s{sTT}\ns_and_b32 s{t3}, s{t3}, 127\nv_mov_b32 v{T}, s{sTT}\nv_writelane_b32 v{T}, s{t3}, 1\nv_lshlrev_b32 v{vSig}, 7, v{T}")
    for ch in range(3):
        a.wait(vm=lambda t: t == ('x', ch))
        for s in range(6*ch, 6*ch+6): a.ds(f"ds_read_b128 {vr(XF+4*s,4)}, v{vXo if s&1 else vXe} offset:{(s>>1)*2048}", ('xf', s))
        for s in range(6*ch, 6*ch+6):
            a.wait(lg=lambda t: t == ('xf', s))
            mfma(SUM, ONES, XF+4*s, SUM if s else None); mfma(SQ, XF+4*s, XF+4*s, SQ if s else None)
    stamp(1)
    a(f"v_mov_b32 v14, 1\ns_cmp_lg_u32 s{sT}, 0\ns_cbranch_scc1 L_nochk\nbuffer_load_dword v14, off, {S(SA_)}, 0 sc1\nL_nochk:")
    a(f"v_cndmask_b32 v{T}, 0, v{SQ}, {sr(sTab,2)}")
    for k in range(1, 4): a(f"v_cndmask_b32 v{T}, v{T}, v{SQ+k}, {sr(sTab+2*k,2)}")
    a(f"v_mov_b32 v{T+1}, v{T}\nv_permlane16_swap_b32 v{T}, v{T+1}\nv_add_f32 v{T}, v{T}, v{T+1}\nv_mov_b32 v{T+1}, v{T}\nv_permlane32_swap_b32 v{T}, v{T+1}\nv_add_f32 v{T}, v{T}, v{T+1}")
    ln_stats(SUM, T, vR, vNB, T+2)
    a(f"v_mul_f32 v{T+2}, v{T+2}, v{vR}\nv_fmaak_f32 v{T+2}, v{T+2}, v{vR}, {f2u(1e-5):#x}\nv_rsq_f32 v{T+2}, v{T+2}\nv_cndmask_b32 v{vR2}, 0, v{T+2}, {sr(sTab+8,2)}")
    for s in range(18):
        normalize(XF+4*s, vR, vNB, pk1)
        a.ds(f"ds_write_b128 v{vXw}, {vr(XF+4*s,4)} offset:{s*1024}", 'w')
    stamp(2)
    def rdW(u):
        s, p = divmod(u, 5); r = RING+4*(u % 7)
        if u == 80:
            for cq in range(4): a(f"v_add_u32 v{vTr+cq}, 65536, v{vTr+cq}")
        for hf in range(2):
            if p < 4: a.ds(f"ds_read_b64_tr_b16 {vr(r+2*hf,2)}, v{vTr+p} offset:{(s*4096+hf*2048)&65535}", ('W', u))
            else: a.ds(f"ds_read_b64_tr_b16 {vr(r+2*hf,2)}, v{vTx} offset:{s*512+hf*256}", ('W', u))
    def small_gemm(bars, vmtag):
        for u in range(90):
            s, p = divmod(u, 5)
            a.wait(lg=lambda t: t == ('W', u), vm=(lambda t: t == (vmtag, s)) if vmtag and p == 0 else None)
            mfma(AC5+4*p, RING+4*(u % 7), XF+4*s, AC5+4*p if s else None)
            if bars and (u+7) % 30 == 0: a.wait(lg='all'); a("s_barrier")
            if u+7 < 90: rdW(u+7)
        for cq in range(4): a(f"v_subrev_u32 v{vTr+cq}, 65536, v{vTr+cq}")
    a("s_waitcnt vmcnt(0)\nv_readfirstlane_b32 s3, v14\ns_cmp_ge_u32 s3, 1\ns_cbranch_scc1 L_ready")
    poll(None, 1, dbg=True)
    a("L_ready:\ns_barrier")
    for u in range(7): rdW(u)
    small_gemm(True, None)
    stamp(3)
    PK = 24
    for p in range(5): gelu_quad(AC5+4*p, PK+2*p, scale=vR2)
    def publish(base):
        a(f"s_mov_b32 s{t4}, {base}")
        a.vmem(f"buffer_store_dwordx4 {vr(PK,4)}, v{vHs}, {S(WS)}, s{t4} offen sc1", 'st')
        a.vmem(f"buffer_store_dwordx4 {vr(PK+4,4)}, v{vHs}, {S(WS)}, s{t4} offen offset:1024 sc1", 'st')
        a.vmem(f"buffer_store_dwordx2 {vr(PK+8,2)}, v{vHx}, {S(WS)}, s{t4} offen sc1", 'st')
    publish(HS)
    pub_addr(False)
    for p in range(5): a.ds(f"ds_read_b64 {vr(RES+2*p,2)}, v{vRes+p}", 'res')
    a(f"s_mov_b32 s{t4}, {CNT+C_H*128}")
    a.wait(vm='all'); stamp(4)
    a(f"s_mov_b64 exec, 3\nbuffer_atomic_add v{vOne}, v{vSig}, {S(WS)}, s{t4} offen\ns_mov_b64 exec, -1")
    lds_wait(0)
    for u in range(7): rdW(u)
    a(f"v_lshlrev_b32 v{T+20}, 3, v{vL}")
    def tile_loads(base, tag):
        a(f"s_mul_i32 s{t1}, s{sTT}, 18432\ns_add_u32 s{t1}, s{t1}, {base}")
        for s in range(18):
            if s and s % 4 == 0: a(f"s_add_u32 s{t1}, s{t1}, 4096")
            if s < 16: a.vmem(f"buffer_load_dwordx4 {vr(XF+4*s,4)}, v{vL16}, {S(WS)}, s{t1} offen offset:{(s&3)*1024} sc1", (tag, s))
            else:
                for hf in range(2): a.vmem(f"buffer_load_dwordx2 {vr(XF+4*s+2*hf,2)}, v{T+20}, {S(WS)}, s{t1} offen offset:{(s&3)*1024+hf*512} sc1", (tag, s))
    stamp(5)
    cnt_off(t0, C_H, sTT); poll(t0, 16); a.vm = []
    stamp(6)
    tile_loads(HS, 'hs')
    small_gemm(False, 'hs')
    lds_signal(1)
    stamp(7)
    for p in range(5):
        for d in range(2): a(f"v_lshlrev_b32 v{T}, 16, v{RES+2*p+d}\nv_and_b32 v{T+1}, s{sMask}, v{RES+2*p+d}\nv_add_f32 v{AC5+4*p+2*d}, v{T}, v{AC5+4*p+2*d}\nv_add_f32 v{AC5+4*p+2*d+1}, v{T+1}, v{AC5+4*p+2*d+1}")
        cvt(PK+2*p, AC5+4*p, AC5+4*p+1); cvt(PK+2*p+1, AC5+4*p+2, AC5+4*p+3)
    publish(X1)
    a(f"v_mov_b32 v{T}, 0\nv_mov_b32 v{T+1}, 0\nv_mov_b32 v{T+4}, 0x3f803f80\nv_cmp_gt_u32 vcc, 2, v{vG}")
    a(f"v_cndmask_b32 v{T+2}, 0, v{PK+8}, vcc\nv_cndmask_b32 v{T+3}, 0, v{PK+9}, vcc")
    for r in [PK+k for k in range(8)] + [T+2, T+3]: a(f"v_dot2c_f32_bf16 v{T}, v{T+4}, v{r}\nv_dot2c_f32_bf16 v{T+1}, v{r}, v{r}")
    a(f"v_permlane16_swap_b32 v{T}, v{T+1}\nv_add_f32 v{T}, v{T}, v{T+1}\nv_mov_b32 v{T+1}, v{T}\nv_permlane32_swap_b32 v{T}, v{T+1}\nv_add_f32 v{T}, v{T}, v{T+1}")
    a(f"v_lshlrev_b32 v{T+21}, 2, v{vL}\ns_lshl_b32 s{t2}, s{sTT}, 10\ns_add_u32 s{t2}, s{t2}, {ST}\ns_lshl_b32 s{t3}, s{sJ}, 7\ns_add_u32 s{t3}, s{t3}, s{t2}")
    a(f"s_mov_b32 exec_hi, 0"); a.vmem(f"buffer_store_dword v{T}, v{T+21}, {S(WS)}, s{t3} offen sc1", 'st'); a("s_mov_b64 exec, -1")
    cnt_off(t0, C_X1, sTT)
    a.wait(vm='all'); stamp(8)
    signal(t0)
    cnt_off(t1, C_W3, sJ); poll(t1, 128); a.vm = []
    stA = Stream(len(PL.stream[0]), D); stream_base(0); w4_check(stA, 0)
    for _ in range(D): stA.load()
    lds_wait(1)
    a(f"v_add_u32 v{vXw}, {R2-R1}, v{vXw}")
    stamp(9)
    cnt_off(t0, C_X1, sTT); poll(t0, 8)
    stamp(10)
    for u in range(4): a.vmem(f"buffer_load_dword v{T+8+u}, v{T+21}, {S(WS)}, s{t2} offen offset:{u*256} sc1", 'sts')
    tile_loads(X1, 'x1')
    a.wait(vm=lambda t: t == 'sts')
    a(f"v_add_f32 v{T+8}, v{T+8}, v{T+9}\nv_add_f32 v{T+10}, v{T+10}, v{T+11}\nv_add_f32 v{T+8}, v{T+8}, v{T+10}\nv_mov_b32 v{T+9}, v{T+8}")
    a(f"v_permlane32_swap_b32 v{T+8}, v{T+9}\nv_add_f32 v{T+8}, v{T+8}, v{T+9}\nv_mov_b32 v{T+9}, v{T+8}\nv_permlane16_swap_b32 v{T+8}, v{T+9}")
    ln_stats(T+8, T+9, vR, vNB, T+10)
    for s in range(18):
        a.wait(vm=lambda t: t == ('x1', s))
        normalize(XF+4*s, vR, vNB, pk2)
        a.ds(f"ds_write_b128 v{vXw}, {vr(XF+4*s,4)} offset:{s*1024}", 'w')
    lds_signal(2)
    stamp(11)
    lds_wait(2)
    rdB(K3, 0)
    stamp(12)
    mlp(0, stA)
    a("s_branch L_fin")

    a("L_grp_b:"); a.vm = []; a.lg = []
    vD1, vD2, vE1, vE2, vE3, vSw = 40, 41, 42, 43, 44, 45
    FW = 64; FP = 88; SM = 96; BM = 112; FD = 128; FO = 160
    SWL = 176; SWO = 224
    a(f"s_lshl2_add_u32 s{sTT}, s{sJ}, s{sT}")
    a(f"s_lshl2_add_u32 s{t0}, s{sI}, s{sT}\ns_lshl_b32 s{t0}, s{t0}, 7\ns_add_u32 s{t1}, s{t0}, 64")
    a("s_waitcnt lgkmcnt(0)")
    a(f"s_getpc_b64 s[0:1]\nL_pc:\ns_add_u32 s0, s0, L_table-L_pc\ns_addc_u32 s1, s1, 0")
    a(f"s_load_dwordx16 {sr(sTab,16)}, s[0:1], s{t0}\ns_load_dwordx16 {sr(sTab+16,16)}, s[0:1], s{t1}")
    srd(WS, pWS, 0x10000000); srd(SX, pX, 2359296)
    stamp(0)
    a(f"s_lshr_b32 s{t0}, s2, 3\ns_cmp_ge_u32 s{t0}, (L_table-{name}+8191)/8192\ns_cbranch_scc1 L_nopf\ns_cmp_lg_u32 s{sT}, 3\ns_cbranch_scc1 L_nopf")
    a(f"s_lshl_b32 s{t0}, s{t0}, 13\nv_lshlrev_b32 v{T}, 7, v{vL}\nv_add_u32 v{T}, s{t0}, v{T}\ns_sub_u32 s{t2+1}, s0, L_table-{name}\ns_subb_u32 s{t2+2}, s1, 0")
    a(f"global_load_dword v62, v{T}, {sr(t2+1,2)}\nL_nopf:")
    a(f"v_bfe_u32 v{T}, v{vL}, 1, 2\nv_xor_b32 v{T}, v{T}, v{vG}\nv_and_b32 v{T+1}, 1, v{vL}\nv_lshlrev_b32 v{T+1}, 4, v{T+1}\nv_lshl_add_u32 v{T}, v{T}, 5, v{T+1}")
    a(f"v_lshrrev_b32 v{T+1}, 3, v{vL}\nv_mul_u32_u24 v{T+2}, 1152, v{T+1}\nv_add_u32 v{vD2}, v{T+2}, v{T}")
    a(f"v_lshrrev_b32 v{T+2}, 5, v{vL}\nv_mul_u32_u24 v{T+2}, {4*1152}, v{T+2}\nv_add_u32 v{vD1}, v{vD2}, v{T+2}")
    a(f"v_and_b32 v{T}, 35, v{vL}\nv_bfe_u32 v{T+2}, v{vL}, 2, 2\nv_lshl_add_u32 v{T}, v{T+2}, 3, v{T}\nv_and_b32 v{T+2}, 1, v{vG}\nv_lshl_add_u32 v{T}, v{T+2}, 2, v{T}\nv_mul_u32_u24 v{vE1}, 1152, v{T}")
    a(f"v_mul_u32_u24 v{vE2}, 1152, v{vL}\nv_lshlrev_b32 v{T+1}, 6, v{T+1}\nv_add_u32 v{T+1}, v{T+1}, v{vL}\nv_add_u32 v{T+1}, 64, v{T+1}\nv_mul_u32_u24 v{vE3}, 1152, v{T+1}")
    sC, sMb, sE, sEm, sR2 = 92, 93, 94, 95, 96
    a(f"s_mul_i32 s{sC}, s{sJ}, 144\ns_lshl_b32 s{sMb}, s{sT}, 10\ns_add_u32 s{sMb}, s{sMb}, {R2}")
    a(f"s_min_u32 s{sE}, s{sT}, 2\ns_lshl_b32 s{sEm}, s{sE}, 10\ns_add_u32 s{sEm}, s{sEm}, {EX}")
    def w_dma(which, stage):
        for n in range(6*stage, 6*stage+6):
            a(f"s_add_u32 m0, s{sMb}, {n*4096}")
            if which == 1: a(f"s_add_u32 s{t0}, s{sR2}, {32*n*1152}")
            elif n < 16: a(f"s_add_u32 s{t0}, s{sR2}, {(9*(n>>1)+4*(n&1))*8*1152}")
            else: a(f"s_add_u32 s{t0}, s{sR2+1}, {36*(n-16)*8*1152}")
            a.vmem(f"buffer_load_dwordx4 v{vD1 if which==1 else vD2}, {S(SB_)}, s{t0} offen lds", (f'w{which}', stage))
        a(f"s_add_u32 m0, s{sEm}, {stage*3072}")
        a(f"s_add_u32 s{t0}, s{sE}, {3*stage}\ns_mul_i32 s{t0}, s{t0}, {(64 if which==1 else 72)*1152}")
        v = vE1 if which == 1 else vE2
        if which == 2 and stage == 2:
            a(f"s_cmp_eq_u32 s{sE}, 2\ns_cselect_b32 s{t0}, 0, s{t0}\ns_cselect_b64 vcc, -1, 0\nv_cndmask_b32 v{vE2}, v{vE2}, v{vE3}, vcc")
        a(f"s_add_u32 s{t0}, s{t0}, s{sC}\ns_add_u32 s{t0}, s{t0}, 128")
        a.vmem(f"buffer_load_dwordx4 v{v}, {S(SB_)}, s{t0} offen lds", (f'w{which}', stage))
    def swz_load(slot, R):
        b = sTab+8*slot
        a(f"s_lshr_b32 s{t0}, s{b+7}, 28\ns_cmp_eq_u32 s{t0}, 1\ns_cselect_b32 s{SA_}, s{pW4}, s{pW3}\ns_cselect_b32 s{SA_+1}, s{pW4+1}, s{pW3+1}")
        a(f"s_mov_b32 s{SA_+2}, 5308416\ns_cmp_eq_u32 s{t0}, 2\ns_cselect_b32 s{SA_}, s{pWO}, s{SA_}\ns_cselect_b32 s{SA_+1}, s{pWO+1}, s{SA_+1}\ns_cselect_b32 s{SA_+2}, 663552, s{SA_+2}")
        a(f"s_and_b32 s{SA_+1}, s{SA_+1}, 0xffff\ns_mov_b32 s{SA_+3}, 0x20000")
        a(f"v_and_b32 v{T}, 1, v{vG}\nv_mul_lo_u32 v{T}, v{T}, s{b+2}\nv_lshrrev_b32 v{T+1}, 1, v{vG}\nv_mul_lo_u32 v{T+1}, v{T+1}, s{b+3}\nv_lshlrev_b32 v{T+2}, 3, v{vM}\nv_add3_u32 v{vSw}, v{T}, v{T+1}, v{T+2}")
        a(f"s_mul_i32 s{t0}, s{sJ}, s{b+1}\ns_add_u32 s{t0}, s{t0}, s{b}\ns_add_u32 s{t1}, s{t0}, s{b+5}")
        for jj in range(8):
            so = t0 if jj < 4 else t1
            a.vmem(f"buffer_load_dwordx2 {vr(R+2*jj,2)}, v{vSw}, {S(SA_)}, s{so} offen", ('sw', slot))
            if jj & 3 != 3: a(f"s_add_u32 s{so}, s{so}, s{b+4}")
    def swz_store(slot, R):
        b = sTab+8*slot
        a(f"s_mul_i32 s{t0}, s{sJ}, {PL.slice}\ns_add_u32 s{t0}, s{t0}, s{b+6}\ns_and_b32 s{t1}, s{b+7}, 0xfffffff\ns_mov_b32 s{t2}, 0x05040100\ns_mov_b32 s{t3}, 0x07060302")
        a.wait(vm=lambda t: t == ('sw', slot))
        for t in range(4):
            for p in range(4): a(f"v_perm_b32 v{SWO+4*t+p}, v{R+4*p+2+(t>>1)}, v{R+4*p+(t>>1)}, s{t3 if t&1 else t2}")
            a.vmem(f"buffer_store_dwordx4 {vr(SWO+4*t,4)}, v{vL16}, {S(WS)}, s{t0} offen sc1", 'sws')
            if t < 3: a(f"s_add_u32 s{t0}, s{t0}, s{t1}")
    def sel(dst, tgt):
        a(f"v_lshlrev_b32 v{T}, 3, v{vG}\nv_sub_u32 v{T}, v{tgt}, v{T}\nv_and_b32 v{T+1}, 1, v{T}\nv_lshlrev_b32 v{T+1}, 4, v{T+1}\nv_lshlrev_b32 v{T+1}, v{T+1}, v{T+6}\nv_ashrrev_i32 v{T}, 1, v{T}")
        for p in range(4): a(f"v_cmp_eq_u32 vcc, {p}, v{T}\nv_cndmask_b32 v{dst+p}, 0, v{T+1}, vcc")
    def early(fold):
        if fold:
            srd(SA_, pPHI, 20736); srd(SB_, pQKV, 1990656)
            a(f"v_lshrrev_b32 v{T}, 2, v{vM}\nv_and_b32 v{T+1}, 3, v{vM}\nv_lshl_add_u32 v{T}, v{T}, 3, v{T+1}\nv_lshlrev_b32 v{T+1}, 4, v{vG}\nv_mov_b32 v{T+5}, {BIG:#x}")
            a(f"v_cmp_eq_u32 vcc, 3, v{vG}\nv_cndmask_b32 v{T+1}, v{T+1}, v{T+5}, vcc")
            a(f"v_mul_u32_u24 v{T+2}, 3456, v{T}\nv_add_u32 v{T+2}, v{T+2}, v{T+1}")
            a(f"s_mul_i32 s{t0}, s{sI}, {32*3456}\ns_mul_i32 s{t1}, s{sTT}, 36\ns_add_u32 s{t0}, s{t0}, s{t1}\ns_add_u32 s{t1}, s{t0}, {4*3456}\ns_mul_i32 s{t2}, s{sTT}, 648")
            for hf in range(2):
                a(f"v_add_u32 v{T+3}, {4*hf}, v{T}\nv_cmp_gt_u32 vcc, 18, v{T+3}\nv_mul_u32_u24 v{T+3}, 36, v{T+3}\nv_add_u32 v{T+3}, v{T+3}, v{T+1}\nv_cndmask_b32 v{T+3}, v{T+5}, v{T+3}, vcc")
                a.vmem(f"buffer_load_dwordx4 {vr(FP+4*hf,4)}, v{T+3}, {S(SA_)}, s{t2} offen", 'fp')
            for mi, off in enumerate((1152, 0, 2304)):
                for hf in range(2): a.vmem(f"buffer_load_dwordx4 {vr(FW+8*mi+4*hf,4)}, v{T+2}, {S(SB_)}, s{t1 if hf else t0} offen offset:{off}", 'fw')
        srd(SB_, pW1, 663552)
        a(f"s_and_b32 s{t0}, s{sT}, 1\ns_lshl_b32 s{t0}, s{t0}, 4\ns_lshr_b32 s{t1}, s{sT}, 1\ns_lshl2_add_u32 s{t0}, s{t1}, s{t0}\ns_mul_i32 s{t0}, s{t0}, 1152\ns_add_u32 s{sR2}, s{t0}, s{sC}")
        for stg in range(3): w_dma(1, stg)
        a(f"v_mov_b32 v{T}, 0\nv_mov_b32 v{T+1}, 0\nv_mov_b32 v{T+2}, 0\nv_mov_b32 v{T+3}, 0")
        a.ds(f"ds_write_b128 v{vLC}, {vr(T,4)}", 'w')
        mlp_setup()
        if fold:
            a(f"v_mov_b32 v{T+6}, 0x3f80")
            sel(SM, vM)
            a(f"v_bfe_u32 v{T+3}, v{vM}, 2, 1\nv_add_u32 v{T+3}, 16, v{T+3}\nv_and_b32 v{T+4}, 3, v{vM}")
            for u in range(3):
                a(f"v_cmp_eq_u32 vcc, {u}, v{T+4}\nv_cndmask_b32 v{T+5}, 63, v{T+3}, vcc"); sel(SM+4+4*u, T+5)
            a.wait(vm=lambda t: t == 'fp')
            for u in range(3):
                for hf in range(2): mfma(FD+8*u+4*hf, FP+4*hf, SM+4*u, None)
            for u in range(3):
                for q in range(4): cvt(BM+4*u+q, FD+8*u+2*q, FD+8*u+2*q+1)
            a.wait(vm=lambda t: t == 'fw')
            for hf in range(2):
                mfma(FD+4*hf, FW+4*hf, BM, None); mfma(FD+8+4*hf, FW+8+4*hf, BM, None); mfma(FD+16+4*hf, FW+16+4*hf, SM, None)
                mfma(FD+24+4*hf, FW+4*hf, BM+4, None); mfma(FD+24+4*hf, FW+8+4*hf, BM+8, FD+24+4*hf); mfma(FD+24+4*hf, FW+16+4*hf, SM+12, FD+24+4*hf)
            a(f"s_mul_i32 s{t0}, s{sTT}, 18\ns_add_u32 s{t0}, s{t0}, s{sI}\ns_lshl_b32 s{t0}, s{t0}, 12\ns_add_u32 s{t0}, s{t0}, {WQ}")
            for tl in range(4):
                for q in range(4): cvt(FO+4*tl+q, FD+8*tl+2*q, FD+8*tl+2*q+1)
                a.vmem(f"buffer_store_dwordx4 {vr(FO+4*tl,4)}, v{vL16}, {S(WS)}, s{t0} offen offset:{tl*1024} sc1", 'fs')
            a(f"s_mul_i32 s{t0}, s{sTT}, 3072\ns_lshl_b32 s{t1}, s{sI}, 8\ns_add_u32 s{t0}, s{t0}, s{t1}\ns_add_u32 s{t0}, s{t0}, {KV}\ns_cmp_lt_u32 s{sI}, 12\ns_cselect_b32 s{t0}, s{t0}, {JUNK:#x}")
            a(f"v_lshlrev_b32 v{T}, 2, v{vL}\nv_mov_b32 v{T+1}, 0")
            a.vmem(f"buffer_store_dword v{T+1}, v{T}, {S(WS)}, s{t0} offen sc1", 'fs')
        stamp(1)
        a("s_waitcnt lgkmcnt(0)"); a.lg = []
        slots = [0] if fold else [0, 1, 2]
        for sl in slots: swz_load(sl, SWL+16*sl)
        srd(SB_, pW2, 663552)
        a(f"s_mul_i32 s{t0}, s{sT}, {8*1152}\ns_add_u32 s{sR2}, s{t0}, s{sC}\ns_mul_i32 s{t0}, s{sT}, {72*1152}\ns_add_u32 s{t0}, s{t0}, {64*1152}\ns_add_u32 s{sR2+1}, s{t0}, s{sC}")
        a.wait(vm=lambda t: t == ('w1', 0)); stamp(2); a("s_barrier")
        a.wait(vm=lambda t: t == ('w1', 1)); a("s_barrier")
        if fold:
            cnt_off(t0, C_FOLD, sTT); a.wait(vm=lambda t: t == 'fs'); signal(t0)
        w_dma(2, 0)
        a.wait(vm=lambda t: t == ('w1', 2)); a("s_barrier")
        w_dma(2, 1)
        a("s_barrier")
        w_dma(2, 2)
        stamp(3)
        for sl in slots: swz_store(sl, SWL+16*sl)
        a.wait(vm=lambda t: t == ('w2', 2)); lds_signal(0)
        stamp(4)
        cnt_off(t0, C_W3, sJ); a.wait(vm='all'); signal(t0)
    a(f"s_cmp_ge_u32 s{sI}, 18\ns_cbranch_scc1 L_nofold")
    early(True); a("s_branch L_earlydone\nL_nofold:"); a.vm = []; a.lg = []
    early(False); a("L_earlydone:")
    stamp(5)
    cnt_off(t0, C_FOLD, sTT); poll(t0, 18); a.vm = []
    stamp(6)
    stQ = Stream(72, DB)
    a(f"s_mul_i32 s{sOff}, s{sTT}, 73728\ns_add_u32 s{sOff}, s{sOff}, {WQ}")
    for _ in range(DB): stQ.load()
    KN = [('N', s) for s in range(18)]
    rdB(KN, 0)
    mpass(stQ, KN, 4, swapped=(2,), prio=0)
    stamp(7)
    swz_load(3, 240)
    KT, QT, VT, XT = ACC, ACC+16, ACC+32, ACC+48
    E = 64; ST1 = 104; ST2 = 108; vMask = 46; vLg = 47
    a(f"v_cmp_gt_u32 vcc, 2, v{vG}\nv_cndmask_b32 v{vMask}, 0, 1.0, vcc\nv_mov_b32 v{vLg}, {f2u(LOG2E):#x}")
    def softmax(Tl, xi):
        lg = lambda tt: [Tl+4*tt+i for i in range(4)] + [XT+4*tt+xi]
        for tt in range(4):
            p = lg(tt)
            a(f"v_max3_f32 v{ST1+tt}, v{p[0]}, v{p[1]}, v{p[2]}\nv_min3_f32 v{ST2+tt}, v{p[0]}, v{p[1]}, v{p[2]}")
            a(f"v_max3_f32 v{ST1+tt}, v{ST1+tt}, v{p[3]}, v{p[4]}\nv_min3_f32 v{ST2+tt}, v{ST2+tt}, v{p[3]}, v{p[4]}")
        allred4([[ST1+k for k in range(4)], [ST2+k for k in range(4)]], ["v_max_f32", "v_min_f32"], lambda k, r: a(f"v_mul_f32 v{r}, v{vLg}, v{r}"))
        for tt in range(4):
            p = lg(tt); e = E+10*tt
            for i in range(5): a(f"v_fma_f32 v{e+i}, v{p[i]}, v{vLg}, -v{ST1+tt}\nv_fma_f32 v{e+5+i}, -v{p[i]}, v{vLg}, v{ST2+tt}")
            for i in range(10): a(f"v_exp_f32 v{e+i}, v{e+i}")
            for h, s_ in ((0, ST1), (5, ST2)):
                a(f"v_add_f32 v{s_+tt}, v{e+h}, v{e+h+1}\nv_add_f32 v{T}, v{e+h+2}, v{e+h+3}\nv_fmac_f32 v{s_+tt}, v{vMask}, v{e+h+4}\nv_add_f32 v{s_+tt}, v{s_+tt}, v{T}")
        allred4([[ST1+k for k in range(4)], [ST2+k for k in range(4)]], ["v_add_f32", "v_add_f32"], lambda k, r: a(f"v_rcp_f32 v{r}, v{r}"))
        for tt in range(4):
            e = E+10*tt
            for i in range(5): a(f"v_mul_f32 v{e+i}, v{ST1+tt}, v{e+i}\nv_mul_f32 v{e+5+i}, v{ST2+tt}, v{e+5+i}")
    softmax(KT, 0)
    vSw0, vSw1, vSr0, vSr1 = 40, 41, 42, 43
    KA = 112; FR = 136; VP = 148
    a(f"s_mul_i32 s{t0}, s{sT}, 1280\ns_add_u32 s{t0}, s{t0}, {SCR}")
    a(f"v_mul_u32_u24 v{T}, 80, v{vM}\nv_add_u32 v{T}, s{t0}, v{T}\nv_lshl_add_u32 v{vSw0}, v{vG}, 3, v{T}\nv_and_b32 v{T+1}, 1, v{vG}\nv_lshl_add_u32 v{vSw1}, v{T+1}, 3, v{T}")
    a(f"v_lshrrev_b32 v{T}, 2, v{vL}\nv_mul_u32_u24 v{T}, 80, v{T}\nv_add_u32 v{T}, s{t0}, v{T}\nv_and_b32 v{T+1}, 3, v{vL}\nv_lshl_add_u32 v{vSr0}, v{T+1}, 3, v{T}\nv_and_b32 v{T+1}, 1, v{vL}\nv_lshl_add_u32 v{vSr1}, v{T+1}, 3, v{T}")
    def kv_mm(tt):
        f = FR+6*(tt & 1); v0 = VP+2*(tt & 1)
        a.wait(lg=lambda t: t == ('f', tt))
        for q in range(3):
            mfma(KA+4*q, f+2*q, v0, KA+4*q if tt else None, 16); mfma(KA+12+4*q, f+2*q, f+4, KA+12+4*q if tt else None, 16)
    for tt in range(4):
        e = E+10*tt; P = T+8*(tt & 1); f = FR+6*(tt & 1)
        cvt(P, e, e+1); cvt(P+1, e+2, e+3); cvt(P+2, e+5, e+6); cvt(P+3, e+7, e+8); cvt(P+4, e+4, e+9)
        a(f"v_cvt_pk_bf16_f32 v{P+5}, v{XT+4*tt+2}, 1.0")
        a.ds(f"ds_write_b64 v{vSw0}, {vr(P,2)}", 'w'); a.ds(f"ds_write_b64 v{vSw0}, {vr(P+2,2)} offset:32", 'w'); a.ds(f"ds_write_b64 v{vSw1}, {vr(P+4,2)} offset:64", 'w')
        a.ds(f"ds_read_b64_tr_b16 {vr(f,2)}, v{vSr0}", ('f', tt)); a.ds(f"ds_read_b64_tr_b16 {vr(f+2,2)}, v{vSr0} offset:32", ('f', tt)); a.ds(f"ds_read_b64_tr_b16 {vr(f+4,2)}, v{vSr1} offset:64", ('f', tt))
        cvt(VP+2*(tt & 1), VT+4*tt, VT+4*tt+1); cvt(VP+2*(tt & 1)+1, VT+4*tt+2, VT+4*tt+3)
        if tt: kv_mm(tt-1)
    kv_mm(3)
    vKa, vKb, vKc, vKba, vKca = 48, 49, 50, 51, 52
    a(f"v_lshlrev_b32 v{vKa}, 2, v{vL}\nv_and_b32 v{vKb}, 127, v{vKa}\nv_mov_b32 v{T+2}, {BIG:#x}\nv_cmp_gt_u32 vcc, 2, v{vG}\nv_cndmask_b32 v{vKba}, v{T+2}, v{vKb}, vcc")
    a(f"v_bfe_u32 v{T}, v{vL}, 2, 1\nv_and_b32 v{T+1}, 1, v{vL}\nv_lshl_add_u32 v{T}, v{T}, 1, v{T+1}\nv_lshl_add_u32 v{T}, v{vG}, 2, v{T}\nv_lshlrev_b32 v{vKc}, 2, v{T}")
    a(f"v_and_b32 v{T}, 10, v{vL}\nv_cmp_eq_u32 vcc, 2, v{T}\nv_cndmask_b32 v{vKca}, v{T+2}, v{vKc}, vcc")
    a(f"s_mul_i32 s{sStO}, s{sTT}, 3072\ns_add_u32 s{sStO}, s{sStO}, {KV}")
    kvregs = [(k, 0, 256*k) for k in range(8)] + [(8+k, 1, 2048+128*k) for k in range(2)] + [(12+k, 2, 2304+64*k) for k in range(10)]
    for r, cls, off in kvregs: a.vmem(f"buffer_atomic_add_f32 v{KA+r}, v{[vKa,vKba,vKca][cls]}, {S(WS)}, s{sStO} offen offset:{off}", 'at')
    stamp(8)
    SWO_save = SWO
    SWO = KT
    swz_store(3, 240)
    softmax(QT, 1)
    PQ = 152
    for tt in range(4):
        e = E+10*tt; P = PQ+6*tt
        a(f"v_mul_f32 v{e+4}, v{vMask}, v{e+4}\nv_mul_f32 v{e+9}, v{vMask}, v{e+9}")
        cvt(P, e, e+1); cvt(P+1, e+2, e+3); cvt(P+2, e+5, e+6); cvt(P+3, e+7, e+8); cvt(P+4, e+4, e+9); a(f"v_mov_b32 v{P+5}, 0")
    cnt_off(t0, C_KV, sTT); cnt_off(t1, C_W4, sJ)
    a.wait(vm='all'); signal(t0); signal(t1)
    stamp(9)
    poll(t0, 32); a.vm = []
    stamp(10)
    for r, cls, off in kvregs: a.vmem(f"buffer_load_dword v{KA+r}, v{[vKa,vKb,vKc][cls]}, {S(WS)}, s{sStO} offen offset:{off} sc1", 'kv')
    lds_wait(1)
    a.wait(vm='all')
    AF = 64; OD = 80
    for q in range(4): cvt(AF+q, KA+2*q, KA+2*q+1); cvt(AF+6+q, KA+12+2*q, KA+13+2*q)
    cvt(AF+4, KA+8, KA+9); cvt(AF+10, KA+20, KA+21); a(f"v_mov_b32 v{AF+5}, 0\nv_mov_b32 v{AF+11}, 0")
    for tt in range(4):
        for dt in range(2): mfma(OD+8*tt+4*dt, AF+6*dt, PQ+6*tt, None)
        for dt in range(2): mfma(OD+8*tt+4*dt, AF+6*dt+4, PQ+6*tt+4, OD+8*tt+4*dt, 16)
    a(f"v_add_u32 v{T+8}, {EX-R1-32768}, v{vHw2}\ns_lshl_b32 s{t0}, s{sT}, 1\nv_add_u32 v{T+9}, s{t0}, v{vO8}")
    for tt in range(4):
        o = OD+8*tt
        a(f"v_add_f32 v{o+7}, {f2u(1e-6):#x}, v{o+7}\nv_rcp_f32 v{o+7}, v{o+7}\nv_mul_f32 v{o+6}, v{vMask}, v{o+6}")
        for i in (0, 1, 2, 3, 6): a(f"v_mul_f32 v{o+i}, v{o+7}, v{o+i}")
        cvt(o, o, o+1); cvt(o+1, o+2, o+3); cvt(o+2, o+6, o+6)
        a.ds(f"ds_write_b64 v{T+8}, {vr(o,2)} offset:{tt*1024}", 'w'); a.ds(f"ds_write_b16 v{T+9}, v{o+2} offset:{tt*512}", 'w')
    stamp(11)
    cnt_off(t1, C_W3, sJ); poll(t1, 128); a.vm = []
    stB = Stream(len(PL.stream[1]), D); stream_base(1); w4_check(stB, 1)
    for _ in range(D): stB.load()
    lds_wait(2)
    rdB(K3, 0)
    stamp(12)
    mlp(1, stB)
    a("L_fin:")
    if stamps:
        a(f"s_lshl_b32 s{t0}, s2, 3\ns_add_u32 s{t0}, s{t0}, s{sW}\ns_lshl_b32 s{t0}, s{t0}, 8\ns_add_u32 s{t0}, s{t0}, {TS}\nv_lshlrev_b32 v{T}, 2, v{vL}")
        a(f"buffer_store_dword v{vStamp}, v{T}, {S(WS)}, s{t0} offen")
    a(f"{end}:\ns_endpgm")
    lines, nadd = fix_hazards(a.L)
    tab = PL.table(); tl = [".p2align 8", ".type L_table,@object", "L_table:"]
    seen = set()
    for i in range(32):
        for t in range(4):
            for sl in range(4):
                m, b, js, al, be, ga, de, d0, ts = tab[i][t][sl]
                dest = WM+d0
                if d0 in seen: dest = JUNK + (i*4+t)*1024
                seen.add(d0)
                tl.append(f".long {b},{js},{al},{be},{ga},{de},{dest},{ts|(m<<28)}")
    return "\n".join(lines) + "\n" + "\n".join(tl) + "\n"

HDR = open('parallel_sum__linear_kernel_hedgehog__mixer_s_mlp__prompt.s.ref').read().split('; Override launch')[0]
def write(path, **kw):
    body = gen(**kw)
    open(path, 'w').write(HDR + f"; @launch grid=(256,1,1) block=(512,1,1) lds={LDS_SIZE}\n" + '.amdgcn_target "amdgcn-amd-amdhsa--gfx950"\n.text\n' + body + '.section .rodata,"a"\n' + kernel_desc(KNAME))
if __name__ == '__main__':
    kw = {}
    for x in sys.argv[2:]:
        k, v = x.split('='); kw[k] = eval(v)
    write(sys.argv[1], **kw)
```

```python
import struct
def f2u(x): return struct.unpack('<I', struct.pack('<f', x))[0]
def vr(b, n=1): return f"v{b}" if n == 1 else f"v[{b}:{b+n-1}]"
def sr(b, n=1): return f"s{b}" if n == 1 else f"s[{b}:{b+n-1}]"

class Asm:
    def __init__(self):
        self.L = []
        self.lg = []
        self.vm = []
        self.mute = False
        self.nlab = 0
    def capture(self, fn):
        self.cap = []; fn(); c = self.cap; self.cap = None; return c
    def __call__(self, s):
        if getattr(self, 'cap', None) is not None: self.cap.append(s); return
        if not self.mute:
            for x in s.split('\n'):
                x = x.strip()
                if x: self.L.append(x if x.endswith(':') else '    ' + x)
    def c(self, s):
        if not self.mute: self.L.append('    ; ' + s)
    def label(self, base):
        self.nlab += 1
        return f"L_{base}_{self.nlab}"
    def ds(self, s, tag):
        self(s); self.lg.append(tag)
    def vmem(self, s, tag):
        self(s); self.vm.append(tag)
    def _need(self, q, pred):
        last = -1
        for i, t in enumerate(q):
            if pred(t): last = i
        if last < 0: return None
        self._cutpos = last + 1
        return sum(1 for t in q[last+1:] if not (isinstance(t, tuple) and t[0] == 'opt'))
    def wait(self, lg=None, vm=None):
        parts = []
        if vm is not None:
            n = 0 if vm == 'all' else self._need(self.vm, vm)
            if n is not None and (vm != 'all' or True):
                assert n <= 63
                parts.append(f"vmcnt({n})")
                self.vm = self.vm[self._cutpos:] if n else []
        if lg is not None:
            n = 0 if lg == 'all' else self._need(self.lg, lg)
            if n is not None:
                n = min(n, 15)
                parts.append(f"lgkmcnt({n})")
                self.lg = self.lg[len(self.lg)-n:] if n else []
        if parts: self("s_waitcnt " + " ".join(parts))
    def text(self): return "\n".join(self.L) + "\n"

def kernel_desc(name, vgpr=256, sgpr=102):
    acc = (vgpr + 3)//4*4
    return f""".p2align 6
.amdhsa_kernel {name}
  .amdhsa_next_free_vgpr {vgpr}
  .amdhsa_next_free_sgpr {sgpr}
  .amdhsa_accum_offset {acc}
  .amdhsa_group_segment_fixed_size 0
  .amdhsa_kernarg_size 96
  .amdhsa_user_sgpr_count 2
  .amdhsa_user_sgpr_kernarg_segment_ptr 1
  .amdhsa_system_sgpr_workgroup_id_x 1
.end_amdhsa_kernel
"""

import re
_REG = re.compile(r'^-?\|?(?:abs\()?([vsa])(?:(\d+)|\[(\d+):(\d+)\])\)?\|?$')
def _regs(op):
    op = op.strip()
    if op in ('vcc', 'vcc_lo', 'vcc_hi'): return {('s', 'vcc')}
    if op == 'm0': return {('s', 'm0')}
    if op == 'exec': return {('s', 'exec')}
    m = _REG.match(op)
    if not m: return set()
    k = m.group(1)
    if m.group(2) is not None: return {(k, int(m.group(2)))}
    return {(k, i) for i in range(int(m.group(3)), int(m.group(4))+1)}
TRANS = ('v_exp_f32', 'v_log_f32', 'v_rcp_f32', 'v_rsq_f32', 'v_sqrt_f32')
class Ins:
    def __init__(s, text):
        s.text = text
        t = text.split(';')[0].strip()
        s.op, _, rest = t.partition(' ')
        toks = [x.strip() for x in rest.split(',')] if rest else []
        mods = ''
        if toks:
            last = toks[-1].split(None, 1)
            toks[-1] = last[0]; mods = last[1] if len(last) > 1 else ''
        s.mods = mods
        op = s.op; R = [_regs(x) for x in toks]
        U = lambda l: set().union(*l) if l else set()
        s.w = set(); s.r = set(); s.cls = 'other'; s.ws = 1; s.C = set(); s.AB = set(); s.data = set()
        if op == 's_nop': s.ws = int(toks[0], 0) + 1
        elif op.startswith('v_mfma'):
            s.cls = 'mfma'; s.w = R[0]; s.AB = R[1] | R[2]; s.C = R[3]; s.r = s.AB | s.C
            assert '16x16x' in op, op
        elif op.startswith('v_'):
            s.cls = 'valu'; s.w = set(R[0]); s.r = U(R[1:])
            if op.startswith('v_permlane'): s.w = R[0] | R[1]; s.r = R[0] | R[1]
            if op.startswith(('v_fmac', 'v_dot2c', 'v_writelane')): s.r |= R[0]
            if '_co_' in op: s.w |= R[1]
            if op.startswith('v_dot2c'): s.AB = U(R[1:])
            if op.startswith('v_dot2_'): s.AB = R[1] | R[2]
        elif op.startswith('ds_'):
            s.cls = 'ds'
            if 'read' in op or 'rtn' in op or 'permute' in op: s.w = R[0]; s.r = U(R[1:])
            else: s.r = U(R)
        elif op.startswith(('buffer_', 'global_')):
            s.cls = 'vmem'
            if 'lds' in mods.split(): s.r = U(R) | {('s', 'm0')}
            elif '_load' in op: s.w = R[0]; s.r = U(R[1:])
            else:
                s.r = U(R)
                if op.endswith(('x4', 'x3')): s.data = R[0] if op.startswith('buffer_') else R[1]
        elif op.startswith('s_') and toks and not op.startswith(('s_cmp', 's_waitcnt', 's_cbranch', 's_branch', 's_bitcmp', 's_setprio', 's_sleep')):
            s.cls = 'salu'; s.w = R[0]; s.r = U(R[1:])
        elif op.startswith(('s_cmp', 's_bitcmp')):
            s.cls = 'salu'; s.r = U(R)
        s.trans = op.replace('_e32', '').replace('_e64', '') in TRANS
        s.dot = op.startswith('v_dot')
        s.vw = {x for x in s.w if x[0] != 's'}; s.sw = {x for x in s.w if x[0] == 's'}
def _need(p, c):
    n = 0
    if p.cls == 'valu':
        if p.vw & c.r or (p.dot and p.vw & c.w):
            if p.dot:
                if c.op == p.op: n = max(n, 3 if p.vw & c.AB else 0)
                else: n = max(n, 3)
            if c.cls == 'mfma': n = max(n, 2)
            if c.op.startswith('v_permlane') or 'dpp' in c.op: n = max(n, 2)
            if c.op.startswith(('v_readfirstlane', 'v_readlane')): n = max(n, 1)
            if p.trans and c.cls in ('valu', 'mfma') and not c.trans: n = max(n, 1)
        if p.sw & c.r:
            if c.cls == 'valu': n = max(n, 4 if c.op.startswith(('v_readlane', 'v_writelane')) else 2)
            if c.cls == 'vmem': n = max(n, 5)
            if c.cls == 'salu': n = max(n, 1)
    if p.cls == 'mfma':
        if c.cls == 'mfma':
            if p.w & c.AB: n = max(n, 8)
            if p.w & c.C and p.w != c.C: n = max(n, 6)
        elif p.w & (c.r | c.w): n = max(n, 8)
        if c.cls == 'valu' and p.C & c.w: n = max(n, 3)
    if p.cls == 'salu' and ('s', 'm0') in p.w and ('s', 'm0') in c.r and c.cls == 'vmem': n = max(n, 1)
    if p.data & c.w: n = max(n, 2 if c.cls in ('valu', 'mfma') else 1)
    return n
def fix_hazards(lines):
    out = []; hist = [[]]; saved = {}; nadd = 0
    for ln in lines:
        t = ln.strip()
        if not t or t.startswith((';', '.')): out.append(ln); continue
        if t.endswith(':'):
            hist = hist + saved.pop(t[:-1], []); out.append(ln); continue
        c = Ins(t); pad = 0
        if not hist: hist = [[]]
        for h in hist:
            d = 0
            for p in reversed(h):
                pad = max(pad, _need(p, c) - d); d += p.ws
                if d >= 8: break
        if pad > 0:
            nop = Ins(f"s_nop {pad-1}"); out.append(f"    s_nop {pad-1}"); nadd += 1
            hist = [h + [nop] for h in hist]
        out.append(ln)
        hist = [(h + [c])[-10:] for h in hist]
        if len(hist) > 1 and all([id(x) for x in h[-9:]] == [id(x) for x in hist[0][-9:]] for h in hist): hist = hist[:1]
        if c.op.startswith('s_cbranch') or c.op == 's_branch':
            saved.setdefault(t.split()[1], []).extend([list(h) for h in hist])
        if c.op in ('s_branch', 's_endpgm'): hist = []
        if not hist and False: pass
    return out, nadd
```

```python
import numpy as np
CNT=0x2E00000; KV=0x10000; KVP=0x2800000; WQ=0x40000; HS=0x300000; X1=0x580000; ST=0x800000; WM=0x900000; PART=0x1500000; TS=0x3000000
C_FOLD=0; C_KV=32; C_PART=64; C_W2=160; C_DUMMY=168; C_H=192; C_X1=320; C_KV2=448; C_W=480; C_W4=512; NCNT=576; CSP=256
R1=0; R2=73728; EX=147456; SCR=157696; LC=162816; LDS_SIZE=163840
def rho(pi): return 9*(pi>>3)+(pi&7) if pi<64 else 9*(pi-64)+8
def colmap():
    m=np.zeros((18,4,8),dtype=np.int64)
    for s in range(18):
        for g in range(4):
            for jj in range(8): m[s,g,jj]=8*rho(4*s+2*(jj>>2)+(g>>1))+4*(g&1)+(jj&3)
    return m
def colmap1():
    m=colmap()
    for s in range(16):
        for g in range(4):
            for jj in range(8): m[s,g,jj]=72*(s>>1)+16*g+8*(s&1)+jj
    return m
class Plan:
    def __init__(s, g3=(5,4), g4=(4,3,2)):
        s.passes=[]; grp=0; P=0
        for n in g3: s.passes.append((grp,3,list(range(P,P+n)))); P+=n; grp^=1
        assert P==9; P=0
        for n in g4: s.passes.append((grp,4,list(range(P,P+n)))); P+=n; grp^=1
        assert P==9
        s.hsteps=[]; s.hw=[]
        for grp,g,Ps in s.passes:
            if g!=3: continue
            w=[]
            for k in range(0,len(Ps)-1,2):
                w.append(('pair',k,len(s.hsteps)))
                for t in range(4): s.hsteps.append(((Ps[k],t),(Ps[k+1],t)))
            if len(Ps)&1:
                w.append(('single',len(Ps)-1,len(s.hsteps)))
                for t in (0,2): s.hsteps.append(((Ps[-1],t),(Ps[-1],t+1)))
            s.hw.append(w)
        assert len(s.hsteps)==18
        s.nearly = s.hw[-1][0][2]
        n2 = s.hw[-1][1][2]
        s.k4=[('h',k) for k in range(n2)]+[('o',0),('o',1),('x',0)]+[('h',k) for k in range(n2,18)]
        s.stream=[[],[]]
        for pi,(grp,g,Ps) in enumerate(s.passes):
            if g==3:
                for k in range(18):
                    for P in Ps: s.stream[grp].append((pi,'w3',k,(P,)))
            else:
                for kind,k in s.k4:
                    if kind=='x':
                        for q in range(0,len(Ps),2): s.stream[grp].append((pi,'x',0,tuple(Ps[q:q+2])))
                    else:
                        for P in Ps: s.stream[grp].append((pi,kind,k,(P,)))
        s.S=[1024*len(s.stream[0]),1024*len(s.stream[1])]
        s.w2off=4*(s.S[0]+s.S[1]); s.slice=s.w2off+82944
    def tasks(s):
        out=[]
        for grp in range(2):
            for n,(pi,kind,k,Ps) in enumerate(s.stream[grp]):
                dest=(4*s.S[0] if grp else 0)+1024*n; ts=s.S[grp]; P=Ps[0]
                if kind=='w3':
                    p=9216
                    if k<16: base,al,be,ga,de=72*(k>>1)+8*(k&1),16,32,1,4
                    else: base,al,be,ga,de=288*(k-16)+64,4,72,1,144
                    out.append((0,base*p+128*P,1152,al*p,be*p,ga*p,de*p,dest,ts))
                elif kind=='h':
                    p=1152; (P0,t0),(P1,t1)=s.hsteps[k]
                    out.append((1,(64*P0+t0)*p+128*P,576*p,16*p,32*p,4*p,(64*(P1-P0)+t1-t0)*p,dest,ts))
                elif kind=='o':
                    p=1152
                    out.append((2,36*k*p+128*P,72*p,4*p,8*p,p,18*p,dest,ts))
                else:
                    p=1152
                    out.append((2,16*p+128*P,72*p,p,0,18*p,128*(Ps[-1]-P),dest,ts))
        for k in range(18):
            p=1152
            if k<16: base,al,be,ga,de=72*(k>>1)+32*(k&1),4,8,1,16
            else: base,al,be,ga,de=288*(k-16)+64,4,72,1,144
            out.append((3,base*p,144,al*p,be*p,ga*p,de*p,s.w2off+k*4608,1024))
        return out
    def table(s):
        T=s.tasks()
        w2=[x for x in T if x[0]==3]; rest=[x for x in T if x[0] in (1,2)]+[x for x in T if x[0]==0]
        last=rest[0]
        tab=[[[None]*5 for t in range(4)] for i in range(32)]
        for i in range(14,32): tab[i][3][0]=w2.pop()
        for sl in range(1,5):
            if sl==3: assert all(x[0]!=0 for x in rest)
            for t in range(4):
                for i in range(18 if sl==1 else 0,32): tab[i][t][sl]=rest.pop() if rest else None
        assert not rest and not w2
        return tab, last
def ij(wg,mode):
    x=wg&7; t=wg>>3
    j=((x&((8>>mode)-1))<<mode)+(t&((1<<mode)-1)); i=((x>>(3-mode))<<(5-mode))+(t>>mode)
    return i,j
```

```python
import sys
from asmlib import *
from layout import *
C0 = -2*0.7978845608028654*1.4426950408889634
C1 = C0*0.044715
LOG2E = 1.4426950408889634
BIG = 0x40000000; JUNK = 0x4000000
KNAME = "parallel_sum__linear_kernel_hedgehog__mixer_s_mlp__prompt_kernel"

def gen(name=KNAME, mode=1, D=16, DB=8, g3=(5,4), g4=(4,3,2), stamps=0, spoll=0, pace=1, pk1=1, pk2=0, aprio=3, aprio0=0, gates=(1,0), gpos=(24,48), gprio=2, pprio=1, prog='r g19 D0 v d D1 f0 D2 e q f1 R f2 M F u g8 W U L2 w P S2 O g5 B A', xfill=6, dstart=3, xsig=12, xnw=8, late=1, wpos=(6,7), eprio=2, tail=1, stg=(3,3,3), bperm=1, lead=8, bprio=2, NR=14, rpos=(0,1,3,5), probe=None, export=None, only=None):
    a = Asm(); PL = Plan(g3, g4); wa = 'D0' not in prog
    WS, SX, SA_, SB_ = 4, 8, 12, 16
    sW, sT, sI, sJ, sOff, sStO, sTo, sTT = 20, 21, 22, 23, 24, 25, 26, 27
    sMask, sLo, sHi = 28, 29, 30
    t0, t1, t2, t3, t4 = 31, 32, 33, 34, 35
    pX, pQKV, pPHI, pWO, pW1, pW2, pW3, pW4, pOUT, pDBG, pWS = 36, 38, 40, 42, 46, 48, 50, 52, 54, 56, 58
    sTab = 60
    vL, vM, vG, vL16, vB2, vB3, vO8, vHw, vHw2, vSt, vSt2, vC1, vOne, vLC, vStamp = 0, 1, 2, 3, 4, 5, 6, 7, 8, 9, 10, 11, 12, 13, 15
    T = 16; Bb = 64; A = 96; ACC = 176; XF = 176
    end = "L_end"
    def srd(q, p, size): a(f"s_mov_b32 s{q}, s{p}\ns_and_b32 s{q+1}, s{p+1}, 0xffff\ns_mov_b32 s{q+2}, {size}\ns_mov_b32 s{q+3}, 0x20000")
    def S(q): return sr(q, 4)
    cur = ['a']
    def stamp(k):
        if export == (cur[0], k): a("s_memrealtime s[98:99]")
        if stamps:
            a("s_memrealtime s[100:101]\ns_waitcnt lgkmcnt(0)"); a.lg = []
            a(f"v_writelane_b32 v{vStamp}, s100, {k}")
    def mfma(d, x, y, c, k=32):
        n = 4 if k == 32 else 2
        a(f"v_mfma_f32_16x16x{k}_bf16 {vr(d,4)}, {vr(x,n)}, {vr(y,n)}, {'0' if c is None else vr(c,4)}")
    def cvt(d, x, y): a(f"v_cvt_pk_bf16_f32 v{d}, v{x}, v{y}")
    pCNT = 44; sOne = 2
    def cnt_off(dst, base, idx, mul=1, add=0):
        a(f"s_mul_i32 s{dst}, s{idx}, {mul*CSP}\ns_add_u32 s{dst}, s{dst}, {(base+add)*CSP}")
    def cnt_base(): a(f"s_add_u32 s{pCNT}, s{pWS}, {CNT}\ns_addc_u32 s{pCNT+1}, s{pWS+1}, 0")
    def signal(so): a(f"s_mov_b32 s1, 1\ns_atomic_add s1, {sr(pCNT,2)}, s{so}")
    def signal_ret(so): a(f"s_mov_b32 s3, 1\ns_atomic_add s3, {sr(pCNT,2)}, s{so} glc")
    def poll(so, target, dbg=False, sleep=0, after_ret=False):
        lp, dn = a.label('poll'), a.label('pdone')
        if after_ret: a(f"s_waitcnt lgkmcnt(0)\ns_cmp_ge_u32 s3, {target-1}\ns_cbranch_scc1 {dn}")
        a(f"s_mov_b32 s{sTo}, 0\n{lp}:")
        if dbg: a(f"buffer_load_dword v14, off, {S(SA_)}, 0 sc1\ns_waitcnt vmcnt(0)\nv_readfirstlane_b32 s3, v14"); a.vm = []
        else: a(f"s_mov_b32 s3, 0\ns_atomic_add s3, {sr(pCNT,2)}, s{so} glc\ns_waitcnt lgkmcnt(0)"); a.lg = []
        a(f"s_cmp_ge_u32 s3, {target}\ns_cbranch_scc1 {dn}")
        if sleep: a(f"s_sleep {sleep}")
        a(f"s_add_u32 s{sTo}, s{sTo}, 1\ns_cmp_lt_u32 s{sTo}, 8000\ns_cbranch_scc1 {lp}\n{dn}:")
    def lds_signal(k):
        a("s_mov_b64 exec, 1")
        a.ds(f"ds_add_u32 v{vLC}, v{vOne} offset:{4*k}", 'sig')
        a("s_mov_b64 exec, -1")
    def lds_wait(k, target=4, sleep=0):
        lp, dn = a.label('lw'), a.label('lwdone')
        a(f"s_mov_b32 s{sTo}, 0\n{lp}:")
        a(f"ds_read_b32 v14, v{vLC} offset:{4*k}\ns_waitcnt lgkmcnt(0)\nv_readfirstlane_b32 s3, v14"); a.lg = []
        a(f"s_cmp_ge_u32 s3, {target}\ns_cbranch_scc1 {dn}")
        if sleep: a(f"s_sleep {sleep}")
        a(f"s_add_u32 s{sTo}, s{sTo}, 1\ns_cmp_lt_u32 s{sTo}, 200000\ns_cbranch_scc1 {lp}\n{dn}:")
    def arrive(k, so, reps=1):
        sk = a.label('arr')
        a(f"s_mov_b64 exec, 1\nds_add_rtn_u32 v14, v{vLC}, v{vOne} offset:{4*k}\ns_mov_b64 exec, -1\ns_waitcnt lgkmcnt(0)\nv_readfirstlane_b32 s3, v14"); a.lg = []
        a(f"s_cmp_lg_u32 s3, 3\ns_cbranch_scc1 {sk}")
        for r in range(reps):
            signal(so)
            if r+1 < reps: a(f"s_add_u32 s{so}, s{so}, {CSP}")
        a(f"{sk}:")
    def allred4(v, op, post=None):
        for q, o in zip(v, op): a(f"v_permlane16_swap_b32 v{q[0]}, v{q[1]}\nv_permlane16_swap_b32 v{q[2]}, v{q[3]}")
        for q, o in zip(v, op): a(f"{o} v{q[0]}, v{q[0]}, v{q[1]}\n{o} v{q[2]}, v{q[2]}, v{q[3]}")
        for q, o in zip(v, op): a(f"v_permlane32_swap_b32 v{q[0]}, v{q[2]}")
        for q, o in zip(v, op): a(f"{o} v{q[0]}, v{q[0]}, v{q[2]}")
        if post:
            for k, q in enumerate(v): post(k, q[0])
        for q in v: a(f"v_mov_b32 v{q[2]}, v{q[0]}")
        for q in v: a(f"v_permlane32_swap_b32 v{q[0]}, v{q[2]}")
        for q in v: a(f"v_mov_b32 v{q[1]}, v{q[0]}\nv_mov_b32 v{q[3]}, v{q[2]}")
        for q in v: a(f"v_permlane16_swap_b32 v{q[0]}, v{q[1]}\nv_permlane16_swap_b32 v{q[2]}, v{q[3]}")
    def gelu_quad(x, P, scale=None, tb=T):
        t = [tb+i for i in range(4)]
        if scale is not None:
            for i in range(4): a(f"v_mul_f32 v{x+i}, v{scale}, v{x+i}")
        for i in range(4): a(f"v_mul_f32 v{t[i]}, v{x+i}, v{x+i}")
        for i in range(4): a(f"v_fmaak_f32 v{t[i]}, v{t[i]}, v{vC1}, {f2u(C0):#x}")
        for i in range(4): a(f"v_mul_f32 v{t[i]}, v{t[i]}, v{x+i}")
        for i in range(4): a(f"v_exp_f32 v{t[i]}, v{t[i]}")
        for i in range(4): a(f"v_add_f32 v{t[i]}, 1.0, v{t[i]}")
        for i in range(4): a(f"v_rcp_f32 v{t[i]}, v{t[i]}")
        for i in range(4): a(f"v_mul_f32 v{t[i]}, v{t[i]}, v{x+i}")
        cvt(P, t[0], t[1]); cvt(P+1, t[2], t[3])
    def normalize(r, vR, vNB, pk):
        for d in range(4): a(f"v_lshlrev_b32 v{T+2*d}, 16, v{r+d}\nv_and_b32 v{T+2*d+1}, s{sMask}, v{r+d}")
        for d in range(4):
            if pk: a(f"v_pk_fma_f32 {vr(T+2*d,2)}, {vr(T+2*d,2)}, {vr(vR,2)}, {vr(vNB,2)}")
            else: a(f"v_fma_f32 v{T+2*d}, v{T+2*d}, v{vR}, v{vNB}\nv_fma_f32 v{T+2*d+1}, v{T+2*d+1}, v{vR}, v{vNB}")
        for d in range(4): cvt(r+d, T+2*d, T+2*d+1)
    def ln_stats(vS, vQ, vR, vNB, vVar):
        a(f"v_mul_f32 v{vS}, {f2u(1/576):#x}, v{vS}\nv_mul_f32 v{vQ}, {f2u(1/576):#x}, v{vQ}")
        a(f"v_fma_f32 v{vVar}, -v{vS}, v{vS}, v{vQ}\nv_max_f32 v{vVar}, 0, v{vVar}")
        a(f"v_add_f32 v{vR}, {f2u(1e-5):#x}, v{vVar}\nv_rsq_f32 v{vR}, v{vR}")
        a(f"v_mul_f32 v{vNB}, v{vS}, v{vR}\nv_mov_b32 v{vR+1}, v{vR}\nv_sub_f32 v{vNB}, 0, v{vNB}\nv_mov_b32 v{vNB+1}, v{vNB}")

    a(f".globl {name}\n.p2align 8\n.type {name},@function\n{name}:")
    a(f"s_cmp_ge_u32 s2, 256\ns_cbranch_scc1 {end}")
    if export: a("s_memrealtime s[98:99]")
    a("s_load_dwordx16 s[36:51], s[0:1], 0\ns_load_dwordx8 s[52:59], s[0:1], 64")
    a(f"v_lshrrev_b32 v1, 6, v0\nv_and_b32 v{vL}, 63, v0\nv_readfirstlane_b32 s{sW}, v1")
    a(f"s_and_b32 s{t0}, s2, 7\ns_lshr_b32 s{t1}, s2, 3")
    a(f"s_and_b32 s{sJ}, s{t0}, {(8>>mode)-1}\ns_lshl_b32 s{sJ}, s{sJ}, {mode}\ns_and_b32 s{t2}, s{t1}, {(1<<mode)-1}\ns_add_u32 s{sJ}, s{sJ}, s{t2}")
    a(f"s_lshr_b32 s{sI}, s{t0}, {3-mode}\ns_lshl_b32 s{sI}, s{sI}, {5-mode}\ns_lshr_b32 s{t2}, s{t1}, {mode}\ns_add_u32 s{sI}, s{sI}, s{t2}")
    a(f"s_and_b32 s{sT}, s{sW}, 3")
    a(f"v_and_b32 v{vM}, 15, v{vL}\nv_lshrrev_b32 v{vG}, 4, v{vL}\nv_lshlrev_b32 v{vL16}, 4, v{vL}")
    a(f"v_mov_b32 v{vOne}, 1\nv_mov_b32 v{vLC}, {LC}")
    if stamps: a(f"v_mov_b32 v{vStamp}, 0")
    a(f"s_mov_b32 s{sMask}, 0xffff0000\ns_mov_b32 s{sLo}, 0x3f80\ns_mov_b32 s{sHi}, 0x3f800000")
    a(f"v_mov_b32 v{T}, 0\nv_lshl_add_u32 v{T+1}, v{vL}, 2, v{vLC}\nds_write_b32 v{T+1}, v{T}")
    if probe:
        ptr, size, base, n, wide = probe
        a("s_waitcnt lgkmcnt(0)")
        srd(SA_, ptr, size)
        if wide:
            a(f"s_lshl_b32 s{t0}, s2, 3\ns_add_u32 s{t0}, s{t0}, s{sW}\ns_mul_i32 s{t0}, s{t0}, {n*1024}\ns_add_u32 s{t0}, s{t0}, {base}")
            for k in range(n): a(f"buffer_load_dwordx4 v[16:19], v{vL16}, {S(SA_)}, s{t0} offen\ns_add_u32 s{t0}, s{t0}, 1024")
            a("s_waitcnt vmcnt(0)")
        else:
            a(f"s_cmp_lg_u32 s{sW}, 0\ns_cbranch_scc1 L_noprobe\ns_mul_i32 s{t0}, s2, 9216\ns_add_u32 s{t0}, s{t0}, {base}")
            for k in range(n): a(f"buffer_load_dword v16, off, {S(SA_)}, s{t0}\ns_add_u32 s{t0}, s{t0}, 256\ns_waitcnt vmcnt(0)")
            a("L_noprobe:")
        a("s_barrier")
    a(f"s_cmp_ge_u32 s{sW}, 4\ns_cbranch_scc1 L_grp_b")

    def mlp_setup():
        a(f"v_add_u32 v{vB2}, 65536, v{vL16}\nv_add_u32 v{vB3}, 131072, v{vL16}")
        a(f"v_lshlrev_b32 v{vO8}, 3, v{vL}\nv_add_u32 v{vO8}, {EX+8192}, v{vO8}")
        a(f"s_lshl_b32 s{t0}, s{sT}, 12\ns_add_u32 s{t0}, s{t0}, {R1}\nv_add_u32 v{vHw}, s{t0}, v{vL16}")
        a(f"s_lshr_b32 s{t0}, s{sT}, 1\ns_lshl_b32 s{t0}, s{t0}, 12\ns_and_b32 s{t1}, s{sT}, 1\ns_lshl_b32 s{t1}, s{t1}, 3\ns_add_u32 s{t0}, s{t0}, s{t1}\ns_add_u32 s{t0}, s{t0}, {R1+32768}\nv_add_u32 v{vHw2}, s{t0}, v{vL16}")
        a(f"v_lshrrev_b32 v{T}, 2, v{vM}\nv_lshlrev_b32 v{T}, 13, v{T}\nv_lshl_add_u32 v{T}, v{vG}, 6, v{T}\nv_and_b32 v{T+1}, 3, v{vL}\nv_lshl_add_u32 v{T}, v{T+1}, 4, v{T}")
        a(f"s_lshl_b32 s{t0}, s{sJ}, 10\ns_lshl_b32 s{t1}, s{sT}, 8\ns_add_u32 s{t0}, s{t0}, s{t1}")
        a(f"s_mul_i32 s{t1}, s{sI}, {9*65536}\ns_add_u32 s{t0}, s{t0}, s{t1}\ns_add_u32 s{t0}, s{t0}, {PART}\nv_add_u32 v{vSt}, s{t0}, v{T}\nv_add_u32 v{vSt2}, 32768, v{vSt}")
        a(f"v_mov_b32 v{vC1}, {f2u(C1):#x}")

    class Stream:
        def reg(s, u): k = u % s.D; return A+4*k if k < 20 else 240+4*(k-20)
        def __init__(s, n, depth): s.n = n; s.nl = 0; s.nu = 0; s.base = 0; s.D = depth; s.hook = {}; s.limit = n
        def load(s):
            if s.nl >= min(s.n, s.limit): return
            if s.nl in s.hook: s.hook.pop(s.nl)()
            off = s.nl*1024
            if off - s.base >= 4096: a(f"s_add_u32 s{sOff}, s{sOff}, {off-s.base}"); s.base = off
            a.vmem(f"buffer_load_dwordx4 {vr(s.reg(s.nl),4)}, v{vL16}, {S(WS)}, s{sOff} offen offset:{off-s.base} sc1", ('A', s.nl))
            s.nl += 1
    def rdB(ks, si):
        kind, k = ks[si]
        for t in range(4):
            r = Bb + 16*(si & 1) + 4*t
            if kind == 'x': a.ds(f"ds_read_b64 {vr(r,2)}, v{vO8} offset:{t*512}", ('B', si)); continue
            o = {'X': R2+t*18432+k*1024, 'N': R1+t*18432+k*1024, 'h': R1+k*4096+t*1024, 'o': EX+k*4096+t*1024}[kind]
            a.ds(f"ds_read_b128 {vr(r,4)}, v{[vL16,vB2,vB3][o>>16]} offset:{o&65535}", ('B', si))
    def mpass(st, ks, n, bars=(), swapped=(), prio=1):
        if prio: a(f"s_setprio {prio}")
        for si, (kind, k) in enumerate(ks):
            for p in range(n):
                u = st.nu
                a.wait(vm=lambda t: t == ('A', u), lg=(lambda t: t == ('B', si)) if p == 0 else None)
                r = st.reg(u)
                for t in range(4):
                    d = ACC+16*p+4*t; c = None if si == 0 else d; b = Bb + 16*(si & 1) + 4*t
                    if kind == 'x': mfma(d, r+2*(p & 1), b, c, 16)
                    elif p in swapped: mfma(d, b, r, c)
                    else: mfma(d, r, b, c)
                    if t == 0 and p == 0 and si+1 < len(ks):
                        if si+1 in bars: a("s_barrier")
                        rdB(ks, si+1)
                if kind != 'x' or (p & 1) or p == n-1:
                    st.nu += 1; st.load()
        if prio: a("s_setprio 0")
    K3 = [('X', s) for s in range(18)]
    def h_write(w, bar, pre=None, post=None):
        for wi, (kind, p0, step) in enumerate(w):
            for tt in range(4):
                if pre and 4*wi+tt in pre: pre[4*wi+tt]()
                if kind == 'pair':
                    P = T+8+4*(tt & 1)
                    gelu_quad(ACC+16*p0+4*tt, P); gelu_quad(ACC+16*(p0+1)+4*tt, P+2)
                    a.ds(f"ds_write_b128 v{vHw}, {vr(P,4)} offset:{step*4096+tt*1024}", 'w')
                else:
                    P = T+8+2*(tt & 1); gelu_quad(ACC+16*p0+4*tt, P)
                    o = step*4096+tt*1024-32768
                    if o < 0:
                        a(f"v_add_u32 v{T+16}, {o & 0xffffffff:#x}, v{vHw2}"); a.ds(f"ds_write_b64 v{T+16}, {vr(P,2)}", 'w')
                    else: a.ds(f"ds_write_b64 v{vHw2}, {vr(P,2)} offset:{o}", 'w')
            if post and wi in post: post[wi]()
            if bar: a.wait(lg='all'); a("s_barrier")
        a.wait(lg='all')
    def p_stores(Ps, ph, last):
        for p, P_ in enumerate(Ps):
            a(f"s_mov_b32 s{sStO}, {P_*65536}")
            for h in range(2):
                x = ACC+16*p+8*h; P = T+8*(p & 1)+4*h
                for i in range(4): cvt(P+i, x+2*i, x+2*i+1)
                a.vmem(f"buffer_store_dwordx4 {vr(P,4)}, v{vSt2 if h else vSt}, {S(WS)}, s{sStO} offen sc1", 'st')
                if pace >= 0 and not last:
                    a(f"s_waitcnt vmcnt({pace})"); a.vm = a.vm[len(a.vm)-pace:] if pace else []
        cnt_off(t0, C_PART, sI, 3, ph); a.wait(vm='all'); arrive(12+ph, t0)
    def reduce_task(Ps, ph):
        skip = a.label('rskip')
        if len(Ps) < 4: a(f"s_cmp_ge_u32 s{sT}, {len(Ps)}\ns_cbranch_scc1 {skip}")
        RL = 96; RX = 128; RS = 140; vA_, vB_, vC_ = T, T+1, T+2
        a(f"s_add_u32 s{t1}, s{sT}, {Ps[0]}")
        a(f"v_bfe_u32 v{T+4}, v{vL}, 2, 2\nv_lshrrev_b32 v{T+5}, 5, v{vL}\nv_lshl_add_u32 v{T+4}, v{T+4}, 1, v{T+5}\ns_lshl_b32 s{t2}, s{t1}, 3\nv_add_u32 v{T+4}, s{t2}, v{T+4}")
        a(f"s_and_b32 s{t2}, s{sJ}, 3\ns_lshl_b32 s{t2}, s{t2}, 2\nv_and_b32 v{T+5}, 3, v{vL}\nv_add_u32 v{T+5}, s{t2}, v{T+5}")
        a(f"s_lshr_b32 s{t2}, s{sJ}, 2\ns_lshl_b32 s{t2}, s{t2}, 1\ns_lshl2_add_u32 s{t2}, s{sI}, s{t2}\nv_and_b32 v{T+6}, 1, v{vG}\nv_add_u32 v{T+6}, s{t2}, v{T+6}")
        a(f"v_lshl_add_u32 v{T+7}, v{T+6}, 4, v{T+5}\nv_mul_u32_u24 v{T+7}, 1152, v{T+7}\nv_lshl_add_u32 v{vA_}, v{T+4}, 4, v{T+7}")
        a.vmem(f"buffer_load_dwordx4 {vr(RX,4)}, v{vA_}, {S(SX)}, 0 offen", 'rx')
        a(f"v_mul_u32_u24 v{T+7}, 57, v{T+4}\nv_lshrrev_b32 v{T+7}, 9, v{T+7}\nv_mul_u32_u24 v{T+8}, 9, v{T+7}\nv_sub_u32 v{T+8}, v{T+4}, v{T+8}")
        a(f"v_cmp_eq_u32 vcc, 8, v{T+8}\nv_and_b32 v{T+9}, 1, v{T+8}\nv_lshl_add_u32 v{T+9}, v{T+7}, 1, v{T+9}\nv_lshrrev_b32 v{T+10}, 1, v{T+8}")
        a(f"v_lshl_add_u32 v{T+9}, v{T+9}, 2, v{T+10}\nv_lshl_add_u32 v{T+9}, v{T+9}, 4, v{T+5}\nv_lshlrev_b32 v{T+9}, 4, v{T+9}")
        a(f"v_lshl_add_u32 v{T+10}, v{T+7}, 5, v{T+5}\nv_lshlrev_b32 v{T+10}, 3, v{T+10}\nv_add_u32 v{T+10}, 16384, v{T+10}")
        a(f"v_cndmask_b32 v{T+9}, v{T+9}, v{T+10}, vcc\nv_mov_b32 v{T+11}, 0x80\nv_cndmask_b32 v{T+11}, 8, v{T+11}, vcc")
        a(f"v_mul_u32_u24 v{T+6}, 18432, v{T+6}\nv_add_u32 v{vB_}, v{T+9}, v{T+6}\nv_add_u32 v{vC_}, v{vB_}, v{T+11}")
        a(f"s_mov_b32 s{t2}, {X1}")
        a.vmem(f"buffer_load_dwordx2 {vr(RX+4,2)}, v{vB_}, {S(WS)}, s{t2} offen sc1", 'rx')
        a.vmem(f"buffer_load_dwordx2 {vr(RX+6,2)}, v{vC_}, {S(WS)}, s{t2} offen sc1", 'rx')
        a(f"s_mul_i32 s{t2}, s{sI}, 9\ns_add_u32 s{t2}, s{t2}, s{t1}\ns_lshl_b32 s{t2}, s{t2}, 16\ns_lshl_b32 s{t3}, s{sJ}, 13\ns_add_u32 s{t2}, s{t2}, s{t3}\ns_add_u32 s{t2}, s{t2}, {PART}\ns_add_u32 s{t3}, s{t2}, 4096")
        for k in range(8): a(f"v_mov_b32 v{RS+k}, 0")
        srd(SA_, pOUT, 2359296)
        cnt_off(t0, C_PART, sI, 3, ph)
        poll(t0, 8)
        for src in range(8):
            a.vmem(f"buffer_load_dwordx4 {vr(RL+4*src,4)}, v{vL16}, {S(WS)}, s{t2 if src<4 else t3} offen offset:{(src&3)*1024} sc1", ('p', src))
        for src in range(8):
            a.wait(vm=lambda t: t == ('p', src))
            for d in range(4): a(f"v_dot2c_f32_bf16 v{RS+2*d}, s{sLo}, v{RL+4*src+d}\nv_dot2c_f32_bf16 v{RS+2*d+1}, s{sHi}, v{RL+4*src+d}")
        for i in range(4): a(f"v_permlane16_swap_b32 v{RS+i}, v{RS+4+i}")
        for x, y in ((0, 2), (1, 3), (4, 6), (5, 7)): a(f"v_permlane32_swap_b32 v{RS+x}, v{RS+y}")
        order = [0, 4, 2, 6, 1, 5, 3, 7]
        for base in (RX, RX+4):
            for d in range(4): a(f"v_dot2c_f32_bf16 v{RS+order[2*d]}, s{sLo}, v{base+d}\nv_dot2c_f32_bf16 v{RS+order[2*d+1]}, s{sHi}, v{base+d}")
        for d in range(4): cvt(RL+d, RS+order[2*d], RS+order[2*d+1])
        a.vmem(f"buffer_store_dwordx4 {vr(RL,4)}, v{vA_}, {S(SA_)}, 0 offen", 'o')
        a(f"{skip}:")
        a.vm = []
    def mlp(me, st, hpre, hpost):
        ps = PL.passes; ng3 = len(g3); pre = True
        for pi, (grp, g, Ps) in enumerate(ps):
            if grp == me:
                ks = K3 if g == 3 else PL.k4
                if not pre: rdB(ks, 0)
                bars = ()
                if pi == ng3: bars = tuple(PL.k4.index(('h', w[2])) for w in PL.hw[-1])
                mpass(st, ks, len(Ps), bars)
            else:
                if pi >= 1:
                    _, pg, pPs = ps[pi-1]
                    if pg == 3: a(f"s_setprio {eprio}"); h_write(PL.hw[pi-1], pi == ng3, hpre, hpost); a("s_setprio 0")
                    else: p_stores(pPs, pi-1-ng3, False)
                if pi+1 < len(ps):
                    pre = pi+1 != ng3
                    if pre and pi >= 1: rdB(K3 if ps[pi+1][1] == 3 else PL.k4, 0)
            if pi+1 < len(ps): a("s_barrier")
            stamp(20+pi)
        if ps[-1][0] == me:
            p_stores(ps[-1][2], len(g4)-1, True); stamp(30)
            reduce_task(ps[-1][2], len(g4)-1)
        else:
            for q in range(len(g4)-1): reduce_task(ps[ng3+q][2], q); stamp(30+q)
        stamp(33)
    def stream_base(me):
        a(f"s_mul_i32 s{sOff}, s{sJ}, {PL.slice}\ns_mul_i32 s{t0}, s{sT}, {PL.S[me]}\ns_add_u32 s{sOff}, s{sOff}, s{t0}\ns_add_u32 s{sOff}, s{sOff}, {WM+(4*PL.S[0] if me else 0)}")
    def chk_issue(base, idx, so, sv_):
        cnt_off(so, base, idx)
        a(f"s_mov_b32 s{sv_}, 0\ns_atomic_add s{sv_}, {sr(pCNT,2)}, s{so} glc")
    def chk_test(so, sv_, target):
        ok = a.label('chkok')
        a.wait(lg='all')
        a(f"s_cmp_ge_u32 s{sv_}, {target}\ns_cbranch_scc1 {ok}")
        poll(so, target, sleep=8)
        a(f"{ok}:")

    vXe, vXo, vXw, vTr, vHs, vHx, vSig, vR, vNB, vK0, vK1, vIr, vL8, vSs, vSl = 40, 41, 42, 44, 48, 49, 50, 52, 54, 56, 57, 58, 59, 60, 61
    vX0 = 62
    RING = 96; AC5 = 124; SUM = 144; SQ = 148; ONES = 152; RES = 156; GT = 64; PK = 24
    sXo, sXm = 96, 97
    sC, sMb, sE, sMe = 92, 93, 94, 95
    vW = 36; vHs2 = 34; vRs = 84; vT2 = 86
    def w_off():
        a(f"s_mul_i32 s{sC}, s{sJ}, 144\ns_min_u32 s{sE}, s{sT}, 2\ns_lshl_b32 s{t0}, s{sT}, 6")
        for k in range(3):
            if k < 2: a(f"v_add_u32 v{T}, s{t0}, v{vL}")
            if k == 1: a(f"v_add_u32 v{T}, 256, v{T}")
            if k == 2: a(f"v_add_u32 v{T}, 512, v{vL}")
            R = T+2
            a(f"v_mul_u32_u24 v{T+1}, 7282, v{T}\nv_lshrrev_b32 v{R}, 16, v{T+1}\nv_mul_u32_u24 v{T+1}, 9, v{R}\nv_sub_u32 v{T+3}, v{T}, v{T+1}")
            a(f"v_bfe_u32 v{T}, v{R}, 1, 2\nv_and_b32 v{T+1}, 1, v{R}\nv_lshl_add_u32 v{T}, v{T+1}, 4, v{T}\nv_and_b32 v{T+1}, 40, v{R}\nv_add_u32 v{T}, v{T}, v{T+1}\nv_bfe_u32 v{T+1}, v{R}, 4, 1\nv_lshl_add_u32 v{T}, v{T+1}, 2, v{T}")
            a(f"v_mul_u32_u24 v{T}, 1152, v{T}\nv_lshl_add_u32 v{vW+k}, v{T+3}, 4, v{T}")
        a(f"s_lshl_b32 s{sMb}, s{sT}, 10\ns_add_u32 s{sMb}, s{sMb}, {R2}\ns_mul_i32 s{sMe}, s{sE}, 9216\ns_add_u32 s{sMe}, s{sMe}, {R2+8192}")
        a(f"s_mul_i32 s{sE}, s{sE}, {64*1152}\ns_add_u32 s{sE}, s{sE}, s{sC}")
        srd(SB_, pW1, 663552)
    def w_dma1(n):
        stage, q = divmod(n, 7)
        if q < 6:
            B = 3*stage+(q >> 1); k = q & 1
            a(f"s_add_u32 m0, s{sMb}, {B*9216+k*4096}\ns_add_u32 s{sTo}, s{sC}, {B*64*1152}")
        else:
            k = 2
            a(f"s_add_u32 m0, s{sMe}, {stage*3*9216}\ns_add_u32 s{sTo}, s{sE}, {3*stage*64*1152}")
        a.vmem(f"buffer_load_dwordx4 v{vW+k}, {S(SB_)}, s{sTo} offen lds", ('w1', stage))
    a(f"s_lshl2_add_u32 s{sTT}, s{sI}, s{sT}")
    a(f"v_lshrrev_b32 v{T}, 3, v{vL}\nv_and_b32 v{T+1}, 7, v{vL}\nv_xor_b32 v{T+1}, v{T+1}, v{vG}\nv_mul_u32_u24 v{T}, 1152, v{T}\nv_lshl_add_u32 v{vX0}, v{T+1}, 4, v{T}")
    a(f"v_xor_b32 v{vX0+1}, 64, v{vX0}\nv_add_u32 v{vX0+1}, {8*1152}, v{vX0+1}")
    a(f"s_mul_i32 s{sXo}, s{sTT}, 18432\ns_mul_i32 s{sXm}, s{sT}, 18432\ns_add_u32 s{sXm}, s{sXm}, {R1}")
    a("s_setprio 2")
    a("s_waitcnt lgkmcnt(0)\ns_barrier")
    srd(SX, pX, 2359296); srd(WS, pWS, 0x10000000)
    stamp(0)
    def pub_addr(sh):
        vHs, vHx = (48, 49) if sh else (vHs2, vHs2+1)
        a(f"s_lshl_b32 s{t4}, s{sTT}, 4")
        if sh: a(f"s_add_u32 s{t4}, s{t4}, s{t2}")
        a(f"v_add_u32 v{T}, s{t4}, v{vM}")
        if sh: a(f"v_cmp_gt_u32 {sr(sTab+8,2)}, s{sTab+10}, v{T}\nv_and_b32 v{T}, 0x7ff, v{T}")
        a(f"v_lshrrev_b32 v{T+1}, 4, v{T}\nv_and_b32 v{T}, 15, v{T}\nv_mul_u32_u24 v{T+1}, 18432, v{T+1}\nv_lshl_add_u32 v{T}, v{vG}, 4, v{T}")
        a(f"s_lshl_b32 s{t4}, s{sJ}, 11\nv_lshl_add_u32 v{T+2}, v{T}, 4, v{T+1}\nv_add_u32 v{vHs}, s{t4}, v{T+2}")
        a(f"s_lshl_b32 s{t4}, s{sJ}, 8\ns_add_u32 s{t4}, s{t4}, 16384\nv_lshl_add_u32 v{T+2}, v{T}, 3, v{T+1}\nv_add_u32 v{T+2}, s{t4}, v{T+2}")
        a(f"v_cmp_gt_u32 vcc, 2, v{vG}\nv_mov_b32 v{T+3}, {BIG:#x}\nv_cndmask_b32 v{vHx}, v{T+3}, v{T+2}, vcc")
    def setup2():
        pub_addr(False)
        mlp_setup()
        a(f"s_mul_i32 s{t2}, s{sJ}, {9*256}\ns_add_u32 s{t2}, s{t2}, s{sXm}\nv_lshl_add_u32 v{T+5}, v{vM}, 4, s{t2}\nv_lshl_add_u32 v{vRs}, v{vG}, 9, v{T+5}\nv_and_b32 v{T}, 1, v{vG}\nv_lshl_add_u32 v{vRs+1}, v{T}, 3, v{T+5}")
        a(f"v_and_b32 v{T}, 7, v{vL}\nv_lshl_add_u32 v{T}, v{vG}, 3, v{T}\nv_lshlrev_b32 v{T}, 4, v{T}\nv_add_u32 v50, {R2+4096}, v{T}\nv_add_u32 v51, {9*4608}, v50")
    def setup1():
        if wa: w_off()
        a(f"v_lshrrev_b32 v{T}, 1, v{vM}\nv_xor_b32 v{T}, v{T}, v{vG}\nv_lshlrev_b32 v{T}, 4, v{T}\nv_lshl_add_u32 v{T}, v{vM}, 7, v{T}")
        a(f"v_add_u32 v{vXe}, s{sXm}, v{T}\nv_xor_b32 v{vXo}, 64, v{vXe}\nv_add_u32 v{vXw}, s{sXm}, v{vL16}")
        for k in range(4): a(f"v_mov_b32 v{ONES+k}, 0x3f803f80")
        a(f"v_bfe_u32 v{T}, v{vL}, 2, 3\nv_lshrrev_b32 v{T+1}, 5, v{vL}\nv_lshl_add_u32 v{T}, v{T}, 1, v{T+1}\nv_mul_u32_u24 v{T}, 144, v{T}\nv_add_u32 v{T}, {R2}, v{T}")
        a(f"v_and_b32 v{T+1}, 3, v{vL}\nv_lshl_add_u32 v{vTr}, v{T+1}, 3, v{T}\nv_and_b32 v{T+1}, 1, v{vL}\nv_lshl_add_u32 v{vTr+2}, v{T+1}, 3, v{T}")
        a(f"v_add_u32 v{vTr+1}, {9*4608}, v{vTr}\nv_add_u32 v{vTr+3}, {9*4608}, v{vTr+2}")
        a(f"v_lshlrev_b32 v{T}, 2, v{vG}\nv_sub_u32 v{T}, v{vM}, v{T}")
        for k in range(4): a(f"v_cmp_eq_u32 {sr(sTab+2*k,2)}, {k}, v{T}")
        a(f"v_cmp_gt_u32 vcc, 4, v{T}\nv_lshlrev_b32 v{T+1}, 3, v{vM}\nv_mov_b32 v{T+2}, {BIG:#x}\nv_cndmask_b32 v{vSs}, v{T+2}, v{T+1}, vcc\nv_lshl_add_u32 v{vSl}, v{vG}, 8, v{T+1}")
        a(f"s_lshr_b32 s{t2}, s{sJ}, 2\ns_add_u32 s{t2}, s{t2}, 1\ns_sub_u32 s{t3}, 0, s{t2}\ns_bitcmp1_b32 s{sJ}, 1\ns_cselect_b32 s{t2}, s{t3}, s{t2}\ns_cselect_b32 s{t3}, -1, 1")
        a(f"s_mov_b32 s{sTab+10}, 2048")
        pub_addr(True)
        a(f"s_add_u32 s{t3}, s{t3}, s{sTT}\ns_and_b32 s{t3}, s{t3}, 127")
        cnt_off(sTab+12, C_H, t3); cnt_off(sTab+13, C_H, sTT); cnt_base()
        a(f"v_lshlrev_b32 v{vL8}, 3, v{vL}")
    fill = a.capture(setup1)
    def xrd(s): a.ds(f"ds_read_b128 {vr(XF+4*s,4)}, v{vXo if s&1 else vXe} offset:{(s>>1)*2048}", ('xf', s))
    def xst(s):
        a.wait(lg=lambda t: t == ('xf', s))
        mfma(SUM, ONES, XF+4*s, SUM if s else None); mfma(SQ, XF+4*s, XF+4*s, SQ if s else None)
    for n in range(18):
        a(f"s_add_u32 m0, s{sXm}, {n*1024-(n>>1)*128}")
        a.vmem(f"buffer_load_dwordx4 v{vX0+(n&1)}, {S(SX)}, s{sXo} offen offset:{(n>>1)*128} lds", ('x', n >> 1))
        if n == xsig: lds_signal(19)
        if n >= xfill:
            for _ in range(3):
                if fill: a(fill.pop(0))
    a(f"s_setprio {aprio0}")
    while fill: a(fill.pop(0))
    stamp(14)
    nw = [0]
    def wd(k=1):
        for _ in range(k):
            if wa and nw[0] < 21: w_dma1(nw[0]); nw[0] += 1
    wd(dstart)
    fill = a.capture(setup2)
    for lam in range(9):
        a.wait(vm=lambda t: t == ('x', lam))
        xrd(2*lam); xrd(2*lam+1)
        if lam >= 2: xst(2*lam-4); xst(2*lam-3)
        for _ in range(2):
            if fill: a(fill.pop(0))
        if lam % 3 == 2: wd()
    for s in range(14, 18): xst(s)
    while fill: a(fill.pop(0))
    stamp(1)
    def diag(dst):
        a(f"v_cndmask_b32 v{dst}, 0, v{SQ}, {sr(sTab,2)}")
        for k in range(1, 4): a(f"v_cndmask_b32 v{dst}, v{dst}, v{SQ+k}, {sr(sTab+2*k,2)}")
    diag(T)
    a(f"v_mov_b32 v{T+1}, v{T}\nv_permlane16_swap_b32 v{T}, v{T+1}\nv_add_f32 v{T}, v{T}, v{T+1}\nv_mov_b32 v{T+1}, v{T}\nv_permlane32_swap_b32 v{T}, v{T+1}\nv_add_f32 v{T}, v{T}, v{T+1}")
    ln_stats(SUM, T, vR, vNB, vK0)
    def st_issue(k): a.ds(f"ds_read_b32 v63, v{vLC} offset:{64+4*k}", 'stf')
    def st_test(k):
        ok = a.label('stok')
        a.wait(lg=lambda t: t == 'stf')
        a(f"v_readfirstlane_b32 s3, v63\ns_cmp_ge_u32 s3, 4\ns_cbranch_scc1 {ok}")
        sv = list(a.lg); lds_wait(16+k); a.lg = sv
        a(f"{ok}:")
    def xn_write(s): a.ds(f"ds_write_b128 v{vXw}, {vr(XF+4*s,4)} offset:{s*1024}", 'w')
    def xn_done():
        lds_signal(7)
        for q in range(2): a.ds(f"ds_read_b128 {vr(RES+4*q,4)}, v{vRs} offset:{256*q}", 'res')
        a.ds(f"ds_read_b64 {vr(RES+8,2)}, v{vRs+1} offset:2048", 'res')
    bounds = [10*sum(stg[:k]) for k in range(1, len(stg))]
    for s in range(18):
        wd()
        if s == 14 and wa: a.wait(vm=lambda t: t == ('w1', 0)); lds_signal(16)
        if s == 16 and not wa: st_issue(0)
        normalize(XF+4*s, vR, vNB, pk1)
        if wa: xn_write(s)
    wd(21)
    if wa: xn_done(); st_issue(0)
    stamp(2)
    def rdW(u):
        s, p = divmod(u, 5); r = RING+4*(u % 7)
        for hf in range(2):
            a.ds(f"ds_read_b64_tr_b16 {vr(r+2*hf,2)}, v{vTr+(2 if p==4 else 0)+(s>=9)} offset:{(s%9)*4608+hf*2304+32*p}", ('W', u))
    def tile_load(s, tag):
        if s and s % 4 == 0: a(f"s_add_u32 s{sXo}, s{sXo}, 4096")
        if s < 16: a.vmem(f"buffer_load_dwordx4 {vr(XF+4*s,4)}, v{vL16}, {S(WS)}, s{sXo} offen offset:{(s&3)*1024} sc1", (tag, s))
        else:
            for hf in range(2): a.vmem(f"buffer_load_dwordx2 {vr(XF+4*s+2*hf,2)}, v{vL8}, {S(WS)}, s{sXo} offen offset:{(s&3)*1024+hf*512} sc1", (tag, s))
    def h_gemm():
        for u in range(90):
            s, p = divmod(u, 5)
            a.wait(lg=lambda t: t == ('W', u))
            mfma(AC5+4*p, RING+4*(u % 7), XF+4*s, AC5+4*p if s else None)
            if wa and u+7+12 in bounds:
                k = bounds.index(u+19)+1; a.wait(vm=lambda t: t == ('w1', k)); lds_signal(16+k)
            if u+7+6 in bounds: st_issue(bounds.index(u+13)+1)
            if u+7 in bounds: st_test(bounds.index(u+7)+1)
            if u+7 < 90: rdW(u+7)
    R2G = 64
    def rdW2(u):
        s, p = divmod(u, 5); o = R2 + s*4608 + p*1024
        if p < 4: a.ds(f"ds_read_b128 {vr(R2G+4*(u%NR),4)}, v{[vL16,vB2,vB3][o>>16]} offset:{o&65535}", ('W', u))
        else: a.ds(f"ds_read_b128 {vr(R2G+4*(u%NR),4)}, v{50+(s>=9)} offset:{(s%9)*4608}", ('W', u))
    def g2_gemm():
        for u in range(90):
            s, p = divmod(u, 5)
            if p == 0: a.wait(lg=lambda t: t == ('W', u+4), vm=lambda t: t == ('hs', s))
            mfma(AC5+4*p, R2G+4*(u % NR), XF+4*s, AC5+4*p)
            if u+NR < 90: rdW2(u+NR)
            if p in (1, 3) and lead+2*s+(p >> 1) < 18:
                tile_load(lead+2*s+(p >> 1), 'hs')
                if lead+2*s+(p >> 1) == 17: lds_signal(5)
    st_test(0)
    for u in range(7): rdW(u)
    a(f"v_mul_f32 v{T}, v{vK0}, v{vR}\nv_fmaak_f32 v{T}, v{T}, v{vR}, {f2u(1e-5):#x}\nv_rsq_f32 v{T}, v{T}\nv_cndmask_b32 v{T}, 0, v{T}, {sr(sTab+8,2)}")
    a(f"v_rcp_f32 v{vIr}, v{T}\nv_mul_f32 v{vK0}, {f2u(C0):#x}, v{T}\nv_mul_f32 v{vK1}, v{T}, v{T}\nv_mul_f32 v{vK1}, v{vK1}, v{T}\nv_mul_f32 v{vK1}, {f2u(C1):#x}, v{vK1}")
    h_gemm()
    a(f"s_setprio {aprio}")
    lds_signal(8)
    stamp(3)
    def pub(k, base):
        vHs, vHx = (48, 49) if base == HS else (vHs2, vHs2+1)
        if k == 0: a(f"s_mov_b32 s{t4}, {base}")
        if k < 2: a.vmem(f"buffer_store_dwordx4 {vr(PK+4*k,4)}, v{vHs}, {S(WS)}, s{t4} offen offset:{1024*k} sc1", 'st')
        else: a.vmem(f"buffer_store_dwordx2 {vr(PK+8,2)}, v{vHx}, {S(WS)}, s{t4} offen sc1", 'st')
    for k, (lo, hi) in enumerate(((0, 8), (8, 20))):
        R_ = range(lo, hi)
        for i in R_: a(f"v_mul_f32 v{GT+i}, v{AC5+i}, v{AC5+i}")
        for i in R_: a(f"v_fma_f32 v{GT+i}, v{GT+i}, v{vK1}, v{vK0}")
        for i in R_: a(f"v_mul_f32 v{GT+i}, v{GT+i}, v{AC5+i}")
        for i in R_: a(f"v_exp_f32 v{GT+i}, v{GT+i}")
        for i in R_: a(f"v_fma_f32 v{GT+i}, v{GT+i}, v{vIr}, v{vIr}")
        for i in R_: a(f"v_rcp_f32 v{GT+i}, v{GT+i}")
        for i in R_: a(f"v_mul_f32 v{GT+i}, v{GT+i}, v{AC5+i}")
        for i in range(lo, hi, 2): cvt(PK+i//2, GT+i, GT+i+1)
        pub(k, HS)
    pub(2, HS)
    lds_signal(4)
    stamp(13)
    a(f"s_mul_i32 s{sXo}, s{sTT}, 18432\ns_add_u32 s{sXo}, s{sXo}, {HS}")
    def pr(d): return (AC5+8*(d & 1)+(d >> 1), AC5+8*(d & 1)+4+(d >> 1)) if d < 8 else (AC5+2*d, AC5+2*d+1)
    def acc_init():
        for d in range(10): a(f"v_lshlrev_b32 v{pr(d)[0]}, 16, v{RES+d}\nv_and_b32 v{pr(d)[1]}, s{sMask}, v{RES+d}")
    lds_wait(15, 1)
    if not wa:
        for s in range(xnw): xn_write(s)
    a.wait(vm='all'); stamp(4)
    signal(sTab+12); signal_ret(sTab+13)
    if not wa:
        for s in range(xnw, 18): xn_write(s)
        xn_done()
    poll(sTab+13, 16, after_ret=True)
    stamp(6)
    for s in range(lead): tile_load(s, 'hs')
    if lead == 18: lds_signal(5)
    acc_init()
    lds_wait(0)
    for u in range(NR): rdW2(u)
    g2_gemm()
    lds_signal(1)
    stamp(7)
    a(f"v_cmp_gt_u32 vcc, 2, v{vG}\ns_lshl_b32 s{t2}, s{sTT}, 10\ns_add_u32 s{t2}, s{t2}, {ST}\ns_lshl_b32 s{t3}, s{sJ}, 7\ns_add_u32 s{t3}, s{t3}, s{t2}")
    for k in range(3):
        for d in range(4*k, min(4*k+4, 10)): cvt(PK+d, *pr(d))
        if k == 2: a(f"v_cndmask_b32 v{T+2}, 0, v{PK+8}, vcc\nv_cndmask_b32 v{T+3}, 0, v{PK+9}, vcc")
        pub(k, X1)
        if k < 2: mfma(SQ, PK+4*k, PK+4*k, SQ if k else None); mfma(SUM, ONES, PK+4*k, SUM if k else None)
        else: mfma(SQ, T+2, T+2, SQ, 16); mfma(SUM, ONES, T+2, SUM, 16)
    diag(SUM+1)
    a.vmem(f"buffer_store_dwordx2 {vr(SUM,2)}, v{vSs}, {S(WS)}, s{t3} offen sc1", 'st')
    lds_signal(6)
    a(f"s_lshl2_add_u32 s{t3}, s{sJ}, s{sT}"); chk_issue(C_W, t3, t4, 0)
    stA = Stream(len(PL.stream[0]), D); stream_base(0)
    if late: stA.limit = next(n for n, b in enumerate(PL.stream[0]) if b[1] != 'w3')
    a(f"v_add_u32 v{vXw}, {R2-R1}, v{vXw}\ns_mul_i32 s{sXo}, s{sTT}, 18432\ns_add_u32 s{sXo}, s{sXo}, {X1}")
    cnt_off(t0, C_X1, sTT)
    a.wait(vm='all'); stamp(8)
    signal_ret(t0)
    poll(t0, 8, after_ret=True)
    stamp(10)
    for u in range(2): a.vmem(f"buffer_load_dwordx2 {vr(T+8+2*u,2)}, v{vSl}, {S(WS)}, s{t2} offen offset:{u*128} sc1", 'sts')
    for s in range(lead): tile_load(s, 'x1')
    chk_test(t4, 0, 32)
    lds_wait(1)
    a.wait(vm=lambda t: t == 'sts')
    a(f"v_add_f32 v{T+8}, v{T+8}, v{T+10}\nv_add_f32 v{T+9}, v{T+9}, v{T+11}\nv_permlane16_swap_b32 v{T+8}, v{T+9}\nv_add_f32 v{T+8}, v{T+8}, v{T+9}\nv_mov_b32 v{T+9}, v{T+8}")
    a(f"v_permlane32_swap_b32 v{T+8}, v{T+9}\nv_add_f32 v{T+8}, v{T+8}, v{T+9}\nv_mov_b32 v{T+9}, v{T+8}\nv_permlane16_swap_b32 v{T+8}, v{T+9}")
    ln_stats(T+8, T+9, vR, vNB, T+10)
    nx = lead
    for s in range(18):
        for _ in range(2):
            if nx < 18: tile_load(nx, 'x1'); nx += 1
            elif stA.nl < D: stA.load()
        a.wait(vm=lambda t: t == ('x1', s))
        normalize(XF+4*s, vR, vNB, pk2)
        a.ds(f"ds_write_b128 v{vXw}, {vr(XF+4*s,4)} offset:{s*1024}", 'w')
    while stA.nl < D: stA.load()
    lds_signal(2)
    stamp(11)
    lds_wait(2)
    rdB(K3, 0)
    stamp(12)
    def red(k):
        def f():
            sk = a.label('nored')
            a(f"s_cmp_ge_u32 s{sI}, 20\ns_cbranch_scc1 {sk}")
            sv = list(a.vm)
            if k == 0: a(f"s_lshl2_add_u32 s{sTT}, s{sJ}, s{sT}"); chk_issue(C_KV, sTT, t4, 0)
            if k == 1:
                chk_test(t4, 0, 32)
                a(f"v_mul_u32_u24 v40, 5120, v{vG}\nv_lshl_add_u32 v40, v{vM}, 4, v40\nv_lshlrev_b32 v41, 2, v{vG}\nv_lshl_add_u32 v41, v{vM}, 4, v41")
                a(f"s_mul_i32 s{t1}, s{sTT}, {32*5120}\ns_lshl_b32 s{t2}, s{sI}, 8\ns_add_u32 s{t1}, s{t1}, s{t2}\ns_add_u32 s{t1}, s{t1}, {KVP}")
                for u in range(8):
                    a(f"buffer_load_dwordx4 {vr(64+4*u,4)}, v40, {S(WS)}, s{t1} offen sc1")
                    if u < 7: a(f"s_add_u32 s{t1}, s{t1}, {4*5120}")
            if k == 2:
                a(f"s_mul_i32 s{t1}, s{sTT}, 5120\ns_add_u32 s{t1}, s{t1}, s{t2}\ns_add_u32 s{t1}, s{t1}, {KV}\ns_waitcnt vmcnt(0)")
                for u in range(1, 8):
                    for q in range(4): a(f"v_add_f32 v{64+q}, v{64+q}, v{64+4*u+q}")
                a("v_permlane16_swap_b32 v64, v65\nv_permlane16_swap_b32 v66, v67\nv_add_f32 v64, v64, v65\nv_add_f32 v66, v66, v67\nv_permlane32_swap_b32 v64, v66\nv_add_f32 v64, v64, v66")
                a(f"buffer_store_dword v64, v41, {S(WS)}, s{t1} offen sc1")
            if k == 3: cnt_off(t4, C_KV2, sTT); a("s_waitcnt vmcnt(0)"); signal(t4)
            a.vm = sv
            a(f"{sk}:")
        return f
    def w4_chk(): a(f"s_lshl2_add_u32 s{sTT}, s{sJ}, s{sT}"); chk_issue(C_W4, sTT, t4, 0)
    def w4_go():
        chk_test(t4, 0, 32); lds_signal(10)
        stA.limit = stA.n
        for _ in range(D): stA.load()
    def seq(*fs): return lambda: [f() for f in fs]
    hk = {rpos[k]: red(k) for k in range(4)}
    if late: hk[wpos[0]] = w4_chk; hk[wpos[1]] = w4_go
    mlp(0, stA, hk, None)
    a("s_branch L_fin")

    a("L_grp_b:"); a.vm = []; a.lg = []; cur[0] = 'b'
    vD1, vD2, vE1, vE2, vE3, vSw = 40, 41, 42, 43, 44, 45
    FW = 64; FP = 88; SM = 96; BM = 112; FD = 128; FO = 160; SWU = 96
    SWL = 176; SWO = 224
    a(f"s_lshl2_add_u32 s{sTT}, s{sJ}, s{sT}")
    a(f"s_lshl2_add_u32 s{t0}, s{sI}, s{sT}\ns_mul_i32 s{sTo}, s{t0}, 160")
    a(f"s_getpc_b64 s[96:97]\nL_pc:\ns_add_u32 s96, s96, L_table-L_pc\ns_addc_u32 s97, s97, 0")
    a(f"s_lshr_b32 s{t2}, s2, 3\ns_cmp_ge_u32 s{t2}, (L_table-{name}+8191)/8192\ns_cbranch_scc1 L_nopf\ns_cmp_lg_u32 s{sT}, 0\ns_cbranch_scc1 L_nopf")
    a(f"s_lshl_b32 s{t2}, s{t2}, 13\nv_lshlrev_b32 v{T}, 7, v{vL}\nv_add_u32 v{T}, s{t2}, v{T}\ns_sub_u32 s{t2+1}, s96, L_table-{name}\ns_subb_u32 s{t2+2}, s97, 0")
    a(f"global_load_dword v62, v{T}, {sr(t2+1,2)}\nL_nopf:")
    sHd, sS, sU = 24, 25, 0
    def tab_load(): a(f"s_add_u32 s96, s96, s{sTo}\ns_addc_u32 s97, s97, 0\ns_load_dwordx16 {sr(sTab,16)}, s[96:97], 0\ns_load_dwordx16 {sr(sTab+16,16)}, s[96:97], 64")
    def common0():
        a("s_waitcnt lgkmcnt(0)\ns_barrier")
        stamp(0)
        srd(WS, pWS, 0x10000000); cnt_base()
    def dbg_issue():
        srd(SA_, pDBG, 256); a.vmem(f"buffer_load_dword v61, off, {S(SA_)}, 0 sc1", 'dbg')
    def dbg_test():
        ok = a.label('rdy')
        a.wait(vm=lambda t: t == 'dbg')
        a(f"v_readfirstlane_b32 s3, v61\ns_cmp_ge_u32 s3, 1\ns_cbranch_scc1 {ok}")
        srd(SA_, pDBG, 256)
        sv = list(a.vm); poll(None, 1, dbg=True, sleep=2); a.vm = sv
        a(f"{ok}:")
    def opt_slot(slot, fn):
        sk = a.label('opt'); a(f"s_cmp_ge_u32 s{sTab+6}, {JUNK}\ns_cbranch_scc1 {sk}"); fn(); a(f"{sk}:")
    def swz_load(slot, R):
        if slot in (0, 4): opt_slot(slot, lambda: swz_load_(slot, R))
        else: swz_load_(slot, R)
    def swz_store(slot, R):
        if slot in (0, 4):
            sv = list(a.vm); opt_slot(slot, lambda: swz_store_(slot, R)); a.vm = sv + [('opt', 'sws', slot)]
        else: swz_store_(slot, R)
    def swz_load_(slot, R):
        b = sTab+8*(slot % 4)
        if slot == 0: srd(SA_, pW2, 663552)
        else: a(f"s_lshr_b32 s{t0}, s{b+7}, 28\ns_cmp_eq_u32 s{t0}, 1\ns_cselect_b32 s{SA_}, s{pW4}, s{pW3}\ns_cselect_b32 s{SA_+1}, s{pW4+1}, s{pW3+1}")
        if slot: a(f"s_mov_b32 s{SA_+2}, 5308416\ns_cmp_eq_u32 s{t0}, 2\ns_cselect_b32 s{SA_}, s{pWO}, s{SA_}\ns_cselect_b32 s{SA_+1}, s{pWO+1}, s{SA_+1}\ns_cselect_b32 s{SA_+2}, 663552, s{SA_+2}")
        if slot: a(f"s_and_b32 s{SA_+1}, s{SA_+1}, 0xffff\ns_mov_b32 s{SA_+3}, 0x20000")
        a(f"v_and_b32 v{T}, 1, v{vG}\nv_mul_lo_u32 v{T}, v{T}, s{b+2}\nv_lshrrev_b32 v{T+1}, 1, v{vG}\nv_mul_lo_u32 v{T+1}, v{T+1}, s{b+3}\nv_lshlrev_b32 v{T+2}, 3, v{vM}\nv_add3_u32 v{vSw}, v{T}, v{T+1}, v{T+2}")
        a(f"s_mul_i32 s{t0}, s{sJ}, s{b+1}\ns_add_u32 s{t0}, s{t0}, s{b}\ns_add_u32 s{t1}, s{t0}, s{b+5}")
        if slot == 0:
            a(f"v_and_b32 v{T+2}, 7, v{vL}\nv_lshlrev_b32 v{T+2}, 1, v{T+2}\nv_add3_u32 v{T+2}, v{T}, v{T+1}, v{T+2}\ns_mov_b32 s{t2}, s{t0}\ns_mov_b32 s{t3}, s{t1}")
            for jj in range(8):
                so = t2 if jj < 4 else t3
                a(f"buffer_load_ushort v{240+jj}, v{T+2}, {S(SA_)}, s{so} offen offset:128")
                if jj & 3 != 3: a(f"s_add_u32 s{so}, s{so}, s{b+4}")
        for jj in range(8):
            so = t0 if jj < 4 else t1
            a.vmem(f"buffer_load_dwordx2 {vr(R+2*jj,2)}, v{vSw}, {S(SA_)}, s{so} offen", ('sw' if slot % 4 else 'opt', slot))
            if jj & 3 != 3: a(f"s_add_u32 s{so}, s{so}, s{b+4}")
    def swz_store_(slot, R):
        b = sTab+8*(slot % 4)
        a(f"s_mul_i32 s{t0}, s{sJ}, {PL.slice}\ns_add_u32 s{t0}, s{t0}, s{b+6}\ns_and_b32 s{t1}, s{b+7}, 0xfffffff\ns_mov_b32 s{t2}, 0x05040100\ns_mov_b32 s{t3}, 0x07060302")
        a.wait(vm=lambda t: t == ('sw' if slot % 4 else 'opt', slot))
        if slot == 0:
            for p in range(4): a(f"v_lshl_or_b32 v{248+p}, v{241+2*p}, 16, v{240+2*p}")
            a(f"v_lshl_add_u32 v{T}, v{vG}, 3, v{vM}\nv_lshlrev_b32 v{T}, 4, v{T}\nv_add_u32 v{T}, 4096, v{T}\nv_mov_b32 v{T+1}, {BIG:#x}\nv_cmp_gt_u32 vcc, 8, v{vM}\nv_cndmask_b32 v{T}, v{T+1}, v{T}, vcc")
            a(f"buffer_store_dwordx4 v[248:251], v{T}, {S(WS)}, s{t0} offen sc1")
        for t in range(4):
            for p in range(4): a(f"v_perm_b32 v{SWO+4*t+p}, v{R+4*p+2+(t>>1)}, v{R+4*p+(t>>1)}, s{t3 if t&1 else t2}")
            a.vmem(f"buffer_store_dwordx4 {vr(SWO+4*t,4)}, v{vL16}, {S(WS)}, s{t0} offen sc1", 'sws')
            if t < 3: a(f"s_add_u32 s{t0}, s{t0}, s{t1}")
    def sel(dst, tgt):
        a(f"v_lshlrev_b32 v{T}, 3, v{vG}\nv_sub_u32 v{T}, v{tgt}, v{T}\nv_and_b32 v{T+1}, 1, v{T}\nv_lshlrev_b32 v{T+1}, 4, v{T+1}\nv_lshlrev_b32 v{T+1}, v{T+1}, v{T+6}\nv_ashrrev_i32 v{T}, 1, v{T}")
        for p in range(4): a(f"v_cmp_eq_u32 vcc, {p}, v{T}\nv_cndmask_b32 v{dst+p}, 0, v{T+1}, vcc")
    def early(fold):
        vFa = 40
        if fold:
            if bperm: a(f"v_lshrrev_b32 v{T+6}, 2, v{vL}\nv_and_b32 v{T+7}, 3, v{vL}\nv_lshlrev_b32 v{vFa+3}, 4, v{vM}\nv_lshl_add_u32 v{vFa+3}, v{vG}, 2, v{vFa+3}")
            else: a(f"v_mov_b32 v{T+6}, v{vM}\nv_mov_b32 v{T+7}, v{vG}")
            a(f"v_lshrrev_b32 v{T}, 2, v{T+6}\nv_and_b32 v{T+1}, 3, v{T+6}\nv_lshl_add_u32 v{T}, v{T}, 3, v{T+1}\nv_lshlrev_b32 v{T+1}, 4, v{T+7}\nv_mov_b32 v{T+5}, {BIG:#x}")
            a(f"v_cmp_eq_u32 vcc, 3, v{T+7}\nv_cndmask_b32 v{T+1}, v{T+1}, v{T+5}, vcc")
            a(f"v_mul_u32_u24 v{T+2}, 3456, v{T}\nv_add_u32 v{vFa}, v{T+2}, v{T+1}")
            for hf in range(2):
                a(f"v_add_u32 v{T+3}, {4*hf}, v{T}\nv_cmp_gt_u32 vcc, 18, v{T+3}\nv_mul_u32_u24 v{T+3}, 36, v{T+3}\nv_add_u32 v{T+3}, v{T+3}, v{T+1}\nv_cndmask_b32 v{vFa+1+hf}, v{T+5}, v{T+3}, vcc")
        def prep_ld():
            if fold:
                srd(SA_, pPHI, 20736)
                a(f"s_mul_i32 s{t0}, s{sI}, {32*3456}\ns_mul_i32 s{t1}, s{sTT}, 36\ns_add_u32 s{t0}, s{t0}, s{t1}\ns_add_u32 s{t1}, s{t0}, {4*3456}\ns_mul_i32 s{t2}, s{sTT}, 648")
                for hf in range(2): a.vmem(f"buffer_load_dwordx4 {vr(FP+4*hf,4)}, v{vFa+1+hf}, {S(SA_)}, s{t2} offen", 'fp')
                srd(SA_, pQKV, 1990656)
                for mi, off in enumerate((1152, 0, 2304)):
                    for hf in range(2): a.vmem(f"buffer_load_dwordx4 {vr(FW+8*mi+4*hf,4)}, v{vFa}, {S(SA_)}, s{t1 if hf else t0} offen offset:{off}", 'fw')
            else:
                a("s_waitcnt lgkmcnt(0)"); swz_load(1, SWU)
        def prep_sel():
            if not fold: return
            a(f"v_mov_b32 v{T+6}, 0x3f80")
            sel(SM, vM)
            a(f"v_bfe_u32 v{T+3}, v{vM}, 2, 1\nv_add_u32 v{T+3}, 16, v{T+3}\nv_and_b32 v{T+4}, 3, v{vM}")
            for u in range(3):
                a(f"v_cmp_eq_u32 vcc, {u}, v{T+4}\nv_cndmask_b32 v{T+5}, 63, v{T+3}, vcc"); sel(SM+4+4*u, T+5)
        def prep_calc():
            if not fold: return
            a.wait(vm=lambda t: t == 'fw')
            if bperm:
                for r in list(range(FP, FP+8)) + list(range(FW, FW+24)): a.ds(f"ds_bpermute_b32 v{r}, v{vFa+3}, v{r}", ('bp', r >= FP))
                a.wait(lg=lambda t: t == ('bp', True))
            for u in range(3):
                for hf in range(2): mfma(FD+8*u+4*hf, FP+4*hf, SM+4*u, None)
            for u in range(3):
                for q in range(4): cvt(BM+4*u+q, FD+8*u+2*q, FD+8*u+2*q+1)
            a.wait(lg='all')
            for hf in range(2):
                mfma(FD+4*hf, FW+4*hf, BM, None); mfma(FD+8+4*hf, FW+8+4*hf, BM, None); mfma(FD+16+4*hf, FW+16+4*hf, SM, None)
                mfma(FD+24+4*hf, FW+4*hf, BM+4, None); mfma(FD+24+4*hf, FW+8+4*hf, BM+8, FD+24+4*hf); mfma(FD+24+4*hf, FW+16+4*hf, SM+12, FD+24+4*hf)
            for tl in range(4):
                for q in range(4): cvt(FO+4*tl+q, FD+8*tl+2*q, FD+8*tl+2*q+1)
        def prep_st():
            if fold:
                a(f"s_mul_i32 s{t0}, s{sTT}, 18\ns_add_u32 s{t0}, s{t0}, s{sI}\ns_lshl_b32 s{t0}, s{t0}, 12\ns_add_u32 s{t0}, s{t0}, {WQ}")
                for tl in range(4): a.vmem(f"buffer_store_dwordx4 {vr(FO+4*tl,4)}, v{vL16}, {S(WS)}, s{t0} offen offset:{tl*1024} sc1", 'sws')
            else:
                swz_store(1, SWU)
        selq = [fold]
        for op in pa:
            if op not in ('r',) and selq[0]: prep_sel(); selq[0] = False
            if op == 'u': prep_calc()
            elif op == 'R': prep_ld()
            elif op == 'U': prep_st(); a.vm[-1] = 'urg'
            else: step(op)
    def step(op):
        if op[0] == 'L':
            k = int(op[1]); a("s_waitcnt lgkmcnt(0)"); a.lg = []
            if len(op) > 2: a.wait(vm=lambda t: t == ('sw', k-1))
            swz_load(k, SWL+16*(k-2))
        elif op[0] == 'S': swz_store(int(op[1]), SWL+16*(int(op[1])-2))
        elif op[0] == 'g': lds_wait(int(op[1:]), sleep=1)
        elif op[0] == 'D':
            for q in range(7): w_dma1(7*int(op[1])+q)
        elif op[0] == 'f': a.wait(vm=lambda t: t == ('w1', int(op[1]))); lds_signal(16+int(op[1])); stamp(40+int(op[1]))
        elif op == 'e': dbg_test(); lds_signal(15)
        elif op == 'O': cnt_off(t0, C_FOLD, sTT); poll(t0, 18, sleep=2); stamp(5)
        elif op == 'B':
            a(f"s_mul_i32 s{sOff}, s{sTT}, 73728\ns_add_u32 s{sOff}, s{sOff}, {WQ}")
            for _ in range(DB): stQ.load()
            stamp(6)
        elif op == 'd': dbg_issue()
        elif op == 'r': a("s_waitcnt lgkmcnt(0)\ns_setprio 3"); swz_load(0, 208); a(f"s_setprio {pprio}")
        elif op == 'v': swz_store(0, 208)
        elif op == 'q':
            def f():
                sv = list(a.vm); cnt_off(t0, C_W2, sJ); a.wait(vm=lambda t: t == ('opt', 'sws', 0)); signal(t0); a.vm = sv
            opt_slot(0, f); stamp(15)
        elif op == 'P':
            sk = a.label('nosig'); sv = list(a.vm)
            a(f"s_cmp_ge_u32 s{sI}, 18\ns_cbranch_scc1 {sk}"); cnt_off(t0, C_FOLD, sTT); a.wait(vm=lambda t: t == 'urg'); signal(t0); a(f"{sk}:"); a.vm = sv; stamp(1)
        elif op[0] == 't': stamp(int(op[1:]))
        elif op[0] == 'p': a(f"s_setprio {op[1]}")
        elif op == 'M':
            srd(SX, pX, 2359296); mlp_setup()
            a(f"s_mul_i32 s{sC}, s{sJ}, {PL.slice}\ns_add_u32 s{sC}, s{sC}, {WM+PL.w2off}\ns_lshl_b32 s{t0}, s{sT}, 10\ns_add_u32 s{sE}, s{sC}, s{t0}\ns_add_u32 s{sMb}, s{t0}, {R2}")
        elif op == 'F':
            lf = a.label('f1'); a(f"s_cmp_lg_u32 s{sT}, 0\ns_cbranch_scc1 {lf}")
            cnt_off(t0, C_W2, sJ); poll(t0, 18); lds_signal(3)
            a(f"{lf}:"); lds_wait(3, 1, sleep=1)
            stamp(3)
        elif op == 'W':
            for n in range(20):
                a(f"s_add_u32 m0, s{sMb}, {n*4096}")
                a.vmem(f"buffer_load_dwordx4 v{vL16}, {S(WS)}, s{sE} offen sc1 lds", 'w2')
                a(f"s_add_u32 s{sE}, s{sE}, 4096")
            a(f"s_mov_b32 m0, {R2+81920}\ns_add_u32 s{sC}, s{sC}, 81920")
            a.vmem(f"buffer_load_dwordx4 v{vL16}, {S(WS)}, s{sC} offen sc1 lds", 'w2')
        elif op == 'w': a.wait(vm=lambda t: t == 'w2'); lds_signal(0); stamp(4)
        elif op == 'A':
            cnt_off(t0, C_W, sJ, 4); a.wait(vm=lambda t: t in ('sws', 'urg')); arrive(9, t0, 4); stamp(2)
    ops = prog.split(); cutp = ops.index('U')+1; pa, pb = ops[:cutp], ops[cutp:]
    assert ops.index('U') < ops.index('P') < ops.index('O') < ops.index('B') and ops.index('d') < ops.index('e') < min(ops.index('q'), ops.index('P'), ops.index('F'))
    stQ = Stream(72, DB)
    common0(); tab_load()
    a(f"s_xor_b32 s{t4}, s{sT}, 3\ns_or_b32 s{t4}, s{t4}, s2\ns_cbranch_scc1 L_nolead1\ns_setprio 3")
    a(f"v_mul_u32_u24 v{T+4}, {CSP}, v{vL}\nv_mov_b32 v{T+5}, 0")
    for n in range(NCNT//64): a(f"s_mov_b32 s{t3}, {CNT+n*64*CSP}\nbuffer_store_dword v{T+5}, v{T+4}, {S(WS)}, s{t3} offen sc1")
    a("L_nolead1:")
    if not wa: vW = 52; w_off()
    a(f"s_cmp_lg_u32 s{t4}, 0\ns_cbranch_scc1 L_nolead2")
    srd(SA_, pDBG, 256)
    a(f"s_waitcnt vmcnt(0)\ns_mov_b64 exec, 1\nbuffer_store_dword v{vOne}, off, {S(SA_)}, 0 sc1\ns_mov_b64 exec, -1\nL_nolead2:")
    a(f"s_setprio {pprio}")
    a(f"s_cmp_ge_u32 s{sI}, 18\ns_cbranch_scc1 L_nofold")
    early(True); vmF = list(a.vm); a("s_branch L_earlydone\nL_nofold:"); a.vm = []; a.lg = []
    early(False); a("L_earlydone:")
    if len(vmF) > len(a.vm): a.vm = vmF
    stamp(14)
    for op in pb: step(op)
    a(f"s_load_dwordx8 {sr(sTab,8)}, s[96:97], 128")
    lds_wait(7)
    for gt, gp in zip(gates, gpos):
        if gt: stQ.hook[gp] = (lambda g_: lambda: (a('s_setprio 3'), lds_wait(g_, sleep=1), a(f's_setprio {gprio}')))(gt)
    KN = [('N', s) for s in range(18)]
    rdB(KN, 0)
    mpass(stQ, KN, 4, swapped=(2,), prio=gprio)
    stamp(7)
    a(f"s_setprio {bprio}")
    if late: swz_load(3, 240); swz_load(4, 156)
    KT, QT, VT, XT = ACC, ACC+16, ACC+32, ACC+48
    E = 64; ST1 = 104; ST2 = 108; vMask = 46; vLg = 47
    a(f"v_cmp_gt_u32 vcc, 2, v{vG}\nv_cndmask_b32 v{vMask}, 0, 1.0, vcc\nv_mov_b32 v{vLg}, {f2u(LOG2E):#x}")
    def softmax(Tl, xi, mid=None):
        lg = lambda tt: [Tl+4*tt+i for i in range(4)] + [XT+4*tt+xi]
        for tt in range(4):
            p = lg(tt)
            a(f"v_max3_f32 v{ST1+tt}, v{p[0]}, v{p[1]}, v{p[2]}\nv_min3_f32 v{ST2+tt}, v{p[0]}, v{p[1]}, v{p[2]}")
            a(f"v_max3_f32 v{ST1+tt}, v{ST1+tt}, v{p[3]}, v{p[4]}\nv_min3_f32 v{ST2+tt}, v{ST2+tt}, v{p[3]}, v{p[4]}")
        allred4([[ST1+k for k in range(4)], [ST2+k for k in range(4)]], ["v_max_f32", "v_min_f32"], lambda k, r: a(f"v_mul_f32 v{r}, v{vLg}, v{r}"))
        for tt in range(4):
            p = lg(tt); e = E+10*tt
            for i in range(5): a(f"v_fma_f32 v{e+i}, v{p[i]}, v{vLg}, -v{ST1+tt}\nv_fma_f32 v{e+5+i}, -v{p[i]}, v{vLg}, v{ST2+tt}")
            for i in range(10): a(f"v_exp_f32 v{e+i}, v{e+i}")
            for h, s_ in ((0, ST1), (5, ST2)):
                a(f"v_add_f32 v{s_+tt}, v{e+h}, v{e+h+1}\nv_add_f32 v{T}, v{e+h+2}, v{e+h+3}\nv_fmac_f32 v{s_+tt}, v{vMask}, v{e+h+4}\nv_add_f32 v{s_+tt}, v{s_+tt}, v{T}")
        if mid: mid()
        allred4([[ST1+k for k in range(4)], [ST2+k for k in range(4)]], ["v_add_f32", "v_add_f32"], lambda k, r: a(f"v_rcp_f32 v{r}, v{r}"))
        for tt in range(4):
            e = E+10*tt
            for i in range(5): a(f"v_mul_f32 v{e+i}, v{ST1+tt}, v{e+i}\nv_mul_f32 v{e+5+i}, v{ST2+tt}, v{e+5+i}")
    softmax(KT, 0)
    vSw0, vSw1, vSr0, vSr1 = 40, 41, 42, 43
    KA = 112; FR = 136; VP = 148
    a(f"s_mul_i32 s{t0}, s{sT}, 1280\ns_add_u32 s{t0}, s{t0}, {SCR}")
    a(f"v_mul_u32_u24 v{T}, 80, v{vM}\nv_add_u32 v{T}, s{t0}, v{T}\nv_lshl_add_u32 v{vSw0}, v{vG}, 3, v{T}\nv_and_b32 v{T+1}, 1, v{vG}\nv_lshl_add_u32 v{vSw1}, v{T+1}, 3, v{T}")
    a(f"v_lshrrev_b32 v{T}, 2, v{vL}\nv_mul_u32_u24 v{T}, 80, v{T}\nv_add_u32 v{T}, s{t0}, v{T}\nv_and_b32 v{T+1}, 3, v{vL}\nv_lshl_add_u32 v{vSr0}, v{T+1}, 3, v{T}\nv_and_b32 v{T+1}, 1, v{vL}\nv_lshl_add_u32 v{vSr1}, v{T+1}, 3, v{T}")
    def kv_mm(tt):
        f = FR+6*(tt & 1); v0 = VP+2*(tt & 1)
        a.wait(lg=lambda t: t == ('f', tt))
        for q in range(3):
            mfma(KA+4*q, f+2*q, v0, KA+4*q if tt else None, 16); mfma(KA+12+4*q, f+2*q, f+4, KA+12+4*q if tt else None, 16)
    for tt in range(4):
        e = E+10*tt; P = T+8*(tt & 1); f = FR+6*(tt & 1)
        cvt(P, e, e+1); cvt(P+1, e+2, e+3); cvt(P+2, e+5, e+6); cvt(P+3, e+7, e+8); cvt(P+4, e+4, e+9)
        a(f"v_cvt_pk_bf16_f32 v{P+5}, v{XT+4*tt+2}, 1.0")
        a.ds(f"ds_write_b64 v{vSw0}, {vr(P,2)}", 'w'); a.ds(f"ds_write_b64 v{vSw0}, {vr(P+2,2)} offset:32", 'w'); a.ds(f"ds_write_b64 v{vSw1}, {vr(P+4,2)} offset:64", 'w')
        a.ds(f"ds_read_b64_tr_b16 {vr(f,2)}, v{vSr0}", ('f', tt)); a.ds(f"ds_read_b64_tr_b16 {vr(f+2,2)}, v{vSr0} offset:32", ('f', tt)); a.ds(f"ds_read_b64_tr_b16 {vr(f+4,2)}, v{vSr1} offset:64", ('f', tt))
        cvt(VP+2*(tt & 1), VT+4*tt, VT+4*tt+1); cvt(VP+2*(tt & 1)+1, VT+4*tt+2, VT+4*tt+3)
        if tt: kv_mm(tt-1)
    kv_mm(3)
    a(f"s_lshl_b32 s{t0}, s{sTT}, 5\ns_add_u32 s{t0}, s{t0}, s{sI}\ns_mul_i32 s{t0}, s{t0}, 5120\ns_add_u32 s{t0}, s{t0}, {KVP}\ns_add_u32 s{t1}, s{t0}, 4096")
    a(f"v_mov_b32 v{KA+10}, v{KA+20}\nv_mov_b32 v{KA+11}, v{KA+21}")
    for q in range(5): a.vmem(f"buffer_store_dwordx4 {vr(KA+4*q,4)}, v{vL16}, {S(WS)}, s{t0 if q<4 else t1} offen offset:{(q&3)*1024} sc1", 'kvs')
    stamp(8)
    SWO_save = SWO
    SWO = KT
    if late: swz_store(3, 240); swz_store(4, 156)
    def mid():
        cnt_off(t4, C_KV, sTT); a.wait(vm='all'); signal(t4)
        if late: cnt_off(t4, C_W4, sJ, 4); arrive(11, t4, 4)
    softmax(QT, 1, mid)
    PQ = 240; PX = 48
    for tt in range(4):
        e = E+10*tt; P = PQ+4*tt
        a(f"v_mul_f32 v{e+4}, v{vMask}, v{e+4}\nv_mul_f32 v{e+9}, v{vMask}, v{e+9}")
        cvt(P, e, e+1); cvt(P+1, e+2, e+3); cvt(P+2, e+5, e+6); cvt(P+3, e+7, e+8); cvt(PX+2*tt, e+4, e+9); a(f"v_mov_b32 v{PX+2*tt+1}, 0")
    stamp(9)
    lds_wait(2)
    stB = Stream(len(PL.stream[1]), D); stream_base(1)
    for _ in range(D): stB.load()
    a("s_setprio 0")
    nb = 18*len(PL.passes[1][2])
    if late: stB.hook[nb] = lambda: lds_wait(10, 1)
    rdB(K3, 0)
    stamp(12)
    KB = 64; AF = 84; OD = 32
    def kv_load():
        chk_test(t4, 0, 20)
        a(f"s_mul_i32 s{t0}, s{sTT}, 5120\ns_add_u32 s{t0}, s{t0}, {KV}\ns_add_u32 s{t1}, s{t0}, 4096")
        for q in range(5): a.vmem(f"buffer_load_dwordx4 {vr(KB+4*q,4)}, v{vL16}, {S(WS)}, s{t0 if q<4 else t1} offen offset:{(q&3)*1024} sc1", 'kv')
    def o_part():
        a.wait(vm=lambda t: t == 'kv')
        for q in range(4): cvt(AF+q, KB+2*q, KB+2*q+1); cvt(AF+6+q, KB+12+2*q, KB+13+2*q)
        cvt(AF+4, KB+8, KB+9); cvt(AF+10, KB+10, KB+11); a(f"v_mov_b32 v{AF+5}, 0\nv_mov_b32 v{AF+11}, 0")
        a(f"v_add_u32 v40, {EX-R1-32768}, v{vHw2}\ns_lshl_b32 s{t0}, s{sT}, 1\nv_add_u32 v41, s{t0}, v{vO8}")
        od = [32, 56, 64, 72]
        for tt in range(4):
            for dt in range(2): mfma(od[tt]+4*dt, AF+6*dt, PQ+4*tt, None)
            for dt in range(2): mfma(od[tt]+4*dt, AF+6*dt+4, PX+2*tt, od[tt]+4*dt, 16)
        for tt in range(4):
            o = od[tt]
            a(f"v_add_f32 v{o+7}, {f2u(1e-6):#x}, v{o+7}\nv_rcp_f32 v{o+7}, v{o+7}\nv_mul_f32 v{o+6}, v{vMask}, v{o+6}")
            for i in (0, 1, 2, 3, 6): a(f"v_mul_f32 v{o+i}, v{o+7}, v{o+i}")
            cvt(o, o, o+1); cvt(o+1, o+2, o+3); cvt(o+2, o+6, o+6)
            a.ds(f"ds_write_b64 v40, {vr(o,2)} offset:{tt*1024}", 'w'); a.ds(f"ds_write_b16 v41, v{o+2} offset:{tt*512}", 'w')
    mlp(1, stB, {0: lambda: chk_issue(C_KV2, sTT, t4, 0), 1: kv_load}, {0: o_part})
    a("L_fin:")
    if export:
        if only: a(f"s_and_b32 s{t0}, s2, {only[0]}\ns_cmp_lg_u32 s{t0}, {only[1]}\ns_cbranch_scc1 {end}")
        a("s_waitcnt lgkmcnt(0)\nL_spin:\ns_memrealtime s[100:101]\ns_waitcnt lgkmcnt(0)\ns_sub_u32 s100, s100, s98\ns_cmp_lt_u32 s100, 10000\ns_cbranch_scc1 L_spin")
    if stamps:
        a(f"s_lshl_b32 s{t0}, s2, 3\ns_add_u32 s{t0}, s{t0}, s{sW}\ns_lshl_b32 s{t0}, s{t0}, 8\ns_add_u32 s{t0}, s{t0}, {TS}\nv_lshlrev_b32 v{T}, 2, v{vL}")
        a(f"buffer_store_dword v{vStamp}, v{T}, {S(WS)}, s{t0} offen")
    a(f"{end}:\ns_endpgm")
    lines, nadd = fix_hazards(a.L)
    tab, dummy = PL.table(); tl = [".p2align 8", ".type L_table,@object", "L_table:"]
    for i in range(32):
        for t in range(4):
            for sl in range(5):
                m, b, js, al, be, ga, de, d0, ts = tab[i][t][sl] or dummy
                dest = WM+d0 if tab[i][t][sl] else JUNK + (i*4+t)*1024
                tl.append(f".long {b},{js},{al},{be},{ga},{de},{dest},{ts|(m<<28)}")
    return "\n".join(lines) + "\n" + "\n".join(tl) + "\n"

HDR = open('parallel_sum__linear_kernel_hedgehog__mixer_s_mlp__prompt.s.ref').read().split('; Override launch')[0]
def write(path, **kw):
    body = gen(**kw)
    open(path, 'w').write(HDR + f"; cfg {kw}\n; @launch grid=(256,1,1) block=(512,1,1) lds={LDS_SIZE}\n" + '.amdgcn_target "amdgcn-amd-amdhsa--gfx950"\n.text\n' + body + '.section .rodata,"a"\n' + kernel_desc(KNAME))
if __name__ == '__main__':
    kw = {}
    for x in sys.argv[2:]:
        k, v = x.split('='); kw[k] = eval(v)
    write(sys.argv[1], **kw)
```

```python
import numpy as np
CNT=0x2E00000; KV=0x10000; KVP=0x2800000; WQ=0x40000; HS=0x300000; X1=0x580000; ST=0x800000; WM=0x880000; PART=0x1500000; TS=0x3000000
C_H=(0,0); C_PART=(3,0); C_FOLD=(1,96); C_W1=(2,0); C_W=(2,32); C_W4=(2,64); C_W2=(2,96); NCNT=128; CSP=256
R1=0; R2=73728; EX=147456; SCR=157696; LC=162816; LDS_SIZE=163840
def rho(pi): return 9*(pi>>3)+(pi&7) if pi<64 else 9*(pi-64)+8
def colmap():
    m=np.zeros((18,4,8),dtype=np.int64)
    for s in range(18):
        for g in range(4):
            for jj in range(8): m[s,g,jj]=8*rho(4*s+2*(jj>>2)+(g>>1))+4*(g&1)+(jj&3)
    return m
def colmap1():
    m=colmap()
    for s in range(16):
        for g in range(4):
            for jj in range(8): m[s,g,jj]=72*(s>>1)+16*g+8*(s&1)+jj
    return m
class Plan:
    def __init__(s, g3=(5,4), g4=(4,3,2), fine=1):
        s.passes=[]; grp=0; P=0
        for n in g3: s.passes.append((grp,3,list(range(P,P+n)))); P+=n; grp^=1
        assert P==9; P=0
        for n in g4: s.passes.append((grp,4,list(range(P,P+n)))); P+=n; grp^=1
        assert P==9
        s.hsteps=[]; s.hw=[]
        for grp,g,Ps in s.passes:
            if g!=3: continue
            w=[]
            npair=len(Ps)//2
            if Ps[-1]==8: npair-=fine
            for k in range(0,2*npair,2):
                w.append(('pair',k,len(s.hsteps)))
                for t in range(4): s.hsteps.append(((Ps[k],t),(Ps[k+1],t)))
            for k in range(2*npair,len(Ps)):
                w.append(('single',k,len(s.hsteps)))
                for t in (0,2): s.hsteps.append(((Ps[k],t),(Ps[k],t+1)))
            s.hw.append(w)
        assert len(s.hsteps)==18
        s.nearly = s.hw[-1][0][2]
        n2 = s.hw[-1][-1][2]
        s.k4=[('h',k) for k in range(n2)]+[('o',0),('o',1),('x',0)]+[('h',k) for k in range(n2,18)]
        s.stream=[[],[]]
        for pi,(grp,g,Ps) in enumerate(s.passes):
            if g==3:
                for k in range(18):
                    for P in Ps: s.stream[grp].append((pi,'w3',k,(P,)))
            else:
                for kind,k in s.k4:
                    if kind=='x':
                        for q in range(0,len(Ps),2): s.stream[grp].append((pi,'x',0,tuple(Ps[q:q+2])))
                    else:
                        for P in Ps: s.stream[grp].append((pi,kind,k,(P,)))
        s.S=[1024*len(s.stream[0]),1024*len(s.stream[1])]
        s.w2off=4*(s.S[0]+s.S[1]); s.slice=s.w2off+82944
    def tasks(s):
        out=[]
        for grp in range(2):
            for n,(pi,kind,k,Ps) in enumerate(s.stream[grp]):
                dest=(4*s.S[0] if grp else 0)+1024*n; ts=s.S[grp]; P=Ps[0]
                if kind=='w3':
                    p=9216
                    if k<16: base,al,be,ga,de=72*(k>>1)+8*(k&1),16,32,1,4
                    else: base,al,be,ga,de=288*(k-16)+64,4,72,1,144
                    out.append((0,base*p+128*P,1152,al*p,be*p,ga*p,de*p,dest,ts))
                elif kind=='h':
                    p=1152; (P0,t0),(P1,t1)=s.hsteps[k]
                    out.append((1,(64*P0+t0)*p+128*P,576*p,16*p,32*p,4*p,(64*(P1-P0)+t1-t0)*p,dest,ts))
                elif kind=='o':
                    p=1152
                    out.append((2,36*k*p+128*P,72*p,4*p,8*p,p,18*p,dest,ts))
                else:
                    p=1152
                    out.append((2,16*p+128*P,72*p,p,0,18*p,128*(Ps[-1]-P),dest,ts))
        for k in range(18):
            p=1152
            if k<16: base,al,be,ga,de=72*(k>>1)+32*(k&1),4,8,1,16
            else: base,al,be,ga,de=288*(k-16)+64,4,72,1,144
            out.append((3,base*p,144,al*p,be*p,ga*p,de*p,s.w2off+k*4608,1024))
        return out
    def table(s):
        T=s.tasks()
        w2=[x for x in T if x[0]==3]; w2x=[(4,)+x[1:] for x in w2]
        rest=[x for x in T if x[0]==0]+[x for x in T if x[0] in (1,2)]
        last=rest[-1]; q=w2+w2x+rest
        tab=[[[None]*4 for t in range(4)] for i in range(32)]
        for sl in (1,2,3,0):
            if sl==3: s.late_w3=sum(1 for x in q if x[0]==0); assert s.late_w3<=40
            for t in range(4):
                for i in range(18 if sl==1 else 0,32): tab[i][t][sl]=q.pop(0) if q else None
        assert not q
        return tab, last
def ij(wg,mode):
    x=wg&7; t=wg>>3
    j=((x&((8>>mode)-1))<<mode)+(t&((1<<mode)-1)); i=((x>>(3-mode))<<(5-mode))+(t>>mode)
    return i,j
```

```python
import sys
from asmlib import *
from layout import *
C0 = -2*0.7978845608028654*1.4426950408889634
C1 = C0*0.044715
LOG2E = 1.4426950408889634
BIG = 0x40000000; JUNK = 0x4000000
KNAME = "parallel_sum__linear_kernel_hedgehog__mixer_s_mlp__prompt_kernel"

def gen(name=KNAME, mode=2, D=16, DB=20, g3=(5,4), g4=(4,3,2), stamps=0, spoll=0, pace=1, pk1=1, pk2=0, aprio=3, aprio0=0, gates=(4,1), midp={20: 'g4', 40: 'g1', 62: 'L', 83: 'S'}, redm=1, xa=8, xb=12, d0b=16, dxa=16, xa0=4, tabe=0, gprio=2, pprio=1, prog='R L2 u U d e P M O g7 S2 B A', fine=1, osc='sc1', kvp=2, hflag=1, wst=2, lsl=4, xfill=18, rot=(1,2,1), cpf=3, dlate=9, xne=0, nosw=(), snake=1, wpre=6, lmode=0, dstart=3, dn=21, f0pos=14, gp0=0, xsig=12, xnw=8, late=2, wpos=(0,2,6,4), lpos=8, eprio=2, tail=1, own=1, tprio=2, pace2=1, pace3=3, deepb=1, sprio=0, lh=5, sg4=None, sg5=None, dot=1, stg=(3,3,3), bperm=1, lead=8, bprio=2, NR=14, rpos=(0,1,3,5), probe=None, export=None, only=None):
    a = Asm(); PL = Plan(g3, g4, fine); wa = 'D0' not in prog; aw = 'W' not in prog; assert D <= 16
    WS, SX, SA_, SB_ = 4, 8, 12, 16
    sW, sT, sI, sJ, sOff, sStO, sTo, sTT = 20, 21, 22, 23, 24, 25, 26, 27
    sMask, sLo, sHi = 28, 29, 30
    t0, t1, t2, t3, t4 = 31, 32, 33, 34, 35
    pX, pQKV, pPHI, pWO, pW1, pW2, pW3, pW4, pOUT, pDBG, pWS = 36, 38, 40, 42, 46, 48, 50, 52, 54, 56, 58
    sTab = 60
    vL, vM, vG, vL16, vB2, vB3, vO8, vHw, vHw2, vSt, vSt2, vC1, vOne, vLC, vStamp = 0, 1, 2, 3, 4, 5, 6, 7, 8, 9, 10, 11, 12, 13, 15
    T = 16; Bb = 64; A = 96; ACC = 176; XF = 176
    end = "L_end"
    def srd(q, p, size): a(f"s_mov_b32 s{q}, s{p}\ns_and_b32 s{q+1}, s{p+1}, 0xffff\ns_mov_b32 s{q+2}, {size}\ns_mov_b32 s{q+3}, 0x20000")
    def S(q): return sr(q, 4)
    cur = ['a']
    def stamp(k):
        if export and cur[0] in export[0] and export[1] == k: a("s_memrealtime s[100:101]")
        if stamps:
            a("s_memrealtime s[100:101]\ns_waitcnt lgkmcnt(0)"); a.lg = []
            a(f"v_writelane_b32 v{vStamp}, s100, {k}")
            cy = {0: 54, 3: 55, 7: 56, 12: 57, 20: 58, 21: 59, 22: 60, 23: 61, 24: 62, 33: 63}
            if k in cy: a(f"s_memtime s[100:101]\ns_waitcnt lgkmcnt(0)\nv_writelane_b32 v{vStamp}, s100, {cy[k]}")
    def mfma(d, x, y, c, k=32):
        n = 4 if k == 32 else 2
        a(f"v_mfma_f32_16x16x{k}_bf16 {vr(d,4)}, {vr(x,n)}, {vr(y,n)}, {'0' if c is None else vr(c,4)}")
    def cvt(d, x, y): a(f"v_cvt_pk_bf16_f32 v{d}, v{x}, v{y}")
    pCNT = 44; sOne = 2
    def cnt_off(dst, base, idx, mul=1, add=0):
        a(f"s_mul_i32 s{dst}, s{idx}, {mul*CSP}\ns_add_u32 s{dst}, s{dst}, {(base[1]+add)*CSP+4*base[0]}")
    def cnt_base(): a(f"s_add_u32 s{pCNT}, s{pWS}, {CNT}\ns_addc_u32 s{pCNT+1}, s{pWS+1}, 0")
    def signal(so): a(f"s_mov_b32 s1, 1\ns_atomic_add s1, {sr(pCNT,2)}, s{so}")
    def signal_ret(so): a(f"s_mov_b32 s3, 1\ns_atomic_add s3, {sr(pCNT,2)}, s{so} glc")
    def poll(so, target, dbg=False, sleep=0, after_ret=False):
        lp, dn = a.label('poll'), a.label('pdone')
        if after_ret: a(f"s_waitcnt lgkmcnt(0)\ns_cmp_ge_u32 s3, {target-(after_ret is True)}\ns_cbranch_scc1 {dn}")
        a(f"s_mov_b32 s{sTo}, 0\n{lp}:")
        if dbg: a(f"buffer_load_dword v14, off, {S(SA_)}, 0 sc1\ns_waitcnt vmcnt(0)\nv_readfirstlane_b32 s3, v14"); a.vm = []
        else: a(f"s_mov_b32 s3, 0\ns_atomic_add s3, {sr(pCNT,2)}, s{so} glc\ns_waitcnt lgkmcnt(0)"); a.lg = []
        a(f"s_cmp_ge_u32 s3, {target}\ns_cbranch_scc1 {dn}")
        if sleep: a(f"s_sleep {sleep}")
        a(f"s_add_u32 s{sTo}, s{sTo}, 1\ns_cmp_lt_u32 s{sTo}, 100000\ns_cbranch_scc1 {lp}\n{dn}:")
    def lds_signal(k):
        a("s_mov_b64 exec, 1")
        a.ds(f"ds_add_u32 v{vLC}, v{vOne} offset:{4*k}", 'sig')
        a("s_mov_b64 exec, -1")
    def lds_wait(k, target=4, sleep=0):
        if sleep: sleep = max(sleep, lsl)
        lp, dn = a.label('lw'), a.label('lwdone')
        a(f"s_mov_b32 s{sTo}, 0\n{lp}:")
        a(f"ds_read_b32 v14, v{vLC} offset:{4*k}\ns_waitcnt lgkmcnt(0)\nv_readfirstlane_b32 s3, v14"); a.lg = []
        a(f"s_cmp_ge_u32 s3, {target}\ns_cbranch_scc1 {dn}")
        if sleep: a(f"s_sleep {sleep}")
        a(f"s_add_u32 s{sTo}, s{sTo}, 1\ns_cmp_lt_u32 s{sTo}, 2000000\ns_cbranch_scc1 {lp}\n{dn}:")
    def arrive(k, so, reps=1):
        sk = a.label('arr')
        a(f"s_mov_b64 exec, 1\nds_add_rtn_u32 v14, v{vLC}, v{vOne} offset:{4*k}\ns_mov_b64 exec, -1\ns_waitcnt lgkmcnt(0)\nv_readfirstlane_b32 s3, v14"); a.lg = []
        a(f"s_cmp_lg_u32 s3, 3\ns_cbranch_scc1 {sk}")
        for r in range(reps):
            signal(so)
            if r+1 < reps: a(f"s_add_u32 s{so}, s{so}, {CSP}")
        a(f"{sk}:")
    def allred4(v, op, post=None):
        for q, o in zip(v, op): a(f"v_permlane16_swap_b32 v{q[0]}, v{q[1]}\nv_permlane16_swap_b32 v{q[2]}, v{q[3]}")
        for q, o in zip(v, op): a(f"{o} v{q[0]}, v{q[0]}, v{q[1]}\n{o} v{q[2]}, v{q[2]}, v{q[3]}")
        for q, o in zip(v, op): a(f"v_permlane32_swap_b32 v{q[0]}, v{q[2]}")
        for q, o in zip(v, op): a(f"{o} v{q[0]}, v{q[0]}, v{q[2]}")
        if post:
            for k, q in enumerate(v): post(k, q[0])
        for q in v: a(f"v_mov_b32 v{q[2]}, v{q[0]}")
        for q in v: a(f"v_permlane32_swap_b32 v{q[0]}, v{q[2]}")
        for q in v: a(f"v_mov_b32 v{q[1]}, v{q[0]}\nv_mov_b32 v{q[3]}, v{q[2]}")
        for q in v: a(f"v_permlane16_swap_b32 v{q[0]}, v{q[1]}\nv_permlane16_swap_b32 v{q[2]}, v{q[3]}")
    GC = 160
    def gelu_quad(x, P, tt):
        t = [T+i for i in range(4)]
        for i in range(4): a(f"v_mul_f32 v{t[i]}, v{x+i}, v{x+i}")
        for i in range(4): a(f"v_fma_f32 v{t[i]}, v{t[i]}, v{GC+4+tt}, v{GC+tt}")
        for i in range(4): a(f"v_mul_f32 v{t[i]}, v{t[i]}, v{x+i}")
        for i in range(4): a(f"v_exp_f32 v{t[i]}, v{t[i]}")
        for i in range(4): a(f"v_fma_f32 v{t[i]}, v{t[i]}, v{GC+8+tt}, v{GC+8+tt}")
        for i in range(4): a(f"v_rcp_f32 v{t[i]}, v{t[i]}")
        for i in range(4): a(f"v_mul_f32 v{t[i]}, v{t[i]}, v{x+i}")
        cvt(P, t[0], t[1]); cvt(P+1, t[2], t[3])
    def gc_load():
        a(f"v_lshl_add_u32 v{T}, v{vM}, 2, v{vLC}")
        for q in range(12): a.ds(f"ds_read_b32 v{GC+q}, v{T} offset:{256+64*q}", 'gc')
    def normalize(r, vR, vNB, pk):
        for d in range(4): a(f"v_lshlrev_b32 v{T+2*d}, 16, v{r+d}\nv_and_b32 v{T+2*d+1}, s{sMask}, v{r+d}")
        for d in range(4):
            if pk: a(f"v_pk_fma_f32 {vr(T+2*d,2)}, {vr(T+2*d,2)}, {vr(vR,2)}, {vr(vNB,2)}")
            else: a(f"v_fma_f32 v{T+2*d}, v{T+2*d}, v{vR}, v{vNB}\nv_fma_f32 v{T+2*d+1}, v{T+2*d+1}, v{vR}, v{vNB}")
        for d in range(4): cvt(r+d, T+2*d, T+2*d+1)
    def ln_stats(vS, vQ, vR, vNB, vVar):
        a(f"v_mul_f32 v{vS}, {f2u(1/576):#x}, v{vS}\nv_mul_f32 v{vQ}, {f2u(1/576):#x}, v{vQ}")
        a(f"v_fma_f32 v{vVar}, -v{vS}, v{vS}, v{vQ}\nv_max_f32 v{vVar}, 0, v{vVar}")
        a(f"v_add_f32 v{vR}, {f2u(1e-5):#x}, v{vVar}\nv_rsq_f32 v{vR}, v{vR}")
        a(f"v_mul_f32 v{vNB}, v{vS}, v{vR}\nv_mov_b32 v{vR+1}, v{vR}\nv_sub_f32 v{vNB}, 0, v{vNB}\nv_mov_b32 v{vNB+1}, v{vNB}")

    a(f".globl {name}\n.p2align 8\n.type {name},@function\n{name}:")
    a(f"s_cmp_ge_u32 s2, 256\ns_cbranch_scc1 {end}")
    if export: a("s_memrealtime s[98:99]\ns_memrealtime s[100:101]")
    a("s_load_dwordx16 s[36:51], s[0:1], 0\ns_load_dwordx8 s[52:59], s[0:1], 64")
    if cpf == 3:
        a(f"s_getpc_b64 s[96:97]\nL_pc0:\ns_lshr_b32 s3, s2, 3\nv_cmp_gt_u32 vcc, 16, v0\nv_lshl_add_u32 v1, v0, 5, s3\nv_lshlrev_b32 v1, 7, v1\ns_and_saveexec_b64 s[4:5], vcc\ns_cbranch_execz L_nopf")
        a("global_load_dword v255, v1, s[96:97]\nL_nopf:\ns_mov_b64 exec, -1")
    a(f"v_lshrrev_b32 v1, 6, v0\nv_and_b32 v{vL}, 63, v0\nv_readfirstlane_b32 s{sW}, v1")
    a(f"s_and_b32 s{t0}, s2, 7\ns_lshr_b32 s{t1}, s2, 3")
    a(f"s_and_b32 s{sJ}, s{t0}, {(8>>mode)-1}\ns_lshl_b32 s{sJ}, s{sJ}, {mode}\ns_and_b32 s{t2}, s{t1}, {(1<<mode)-1}\ns_add_u32 s{sJ}, s{sJ}, s{t2}")
    a(f"s_lshr_b32 s{sI}, s{t0}, {3-mode}\ns_lshl_b32 s{sI}, s{sI}, {5-mode}\ns_lshr_b32 s{t2}, s{t1}, {mode}\ns_add_u32 s{sI}, s{sI}, s{t2}")
    a(f"s_and_b32 s{sT}, s{sW}, 3")
    a(f"v_and_b32 v{vM}, 15, v{vL}\nv_lshrrev_b32 v{vG}, 4, v{vL}\nv_lshlrev_b32 v{vL16}, 4, v{vL}")
    a(f"v_mov_b32 v{vOne}, 1\nv_mov_b32 v{vLC}, {LC}")
    if stamps: a(f"v_mov_b32 v{vStamp}, 0")
    a(f"s_mov_b32 s{sMask}, 0xffff0000\ns_mov_b32 s{sLo}, 0x3f80\ns_mov_b32 s{sHi}, 0x3f800000")
    if probe:
        a("s_waitcnt lgkmcnt(0)")
        a(f"s_cmp_lg_u32 s{sW}, 0\ns_cbranch_scc1 L_noprobe\ns_mul_i32 s{t0}, s2, 2048")
        for ptr in probe:
            srd(SA_, abs(ptr), 663552)
            a(f"buffer_load_dword v30, off, {S(SA_)}, s{t0}\ns_add_u32 s{t0}, s{t0}, 128")
            if ptr > 0: a("s_waitcnt vmcnt(0)")
        a("L_noprobe:")
    a(f"s_cmp_lt_u32 s{sW}, 4\ns_cbranch_scc1 L_grp_a\ns_barrier\ns_branch L_grp_b\nL_grp_a:" if tabe == 2 else f"s_cmp_ge_u32 s{sW}, 4\ns_cbranch_scc1 L_grp_b")

    def rot_calc(dst):
        a(f"s_and_b32 s{t0}, s{sJ}, 3\ns_mul_i32 s{t0}, s{t0}, {rot[1]}\ns_lshr_b32 s{t1}, s{sJ}, 2\ns_mul_i32 s{t1}, s{t1}, {rot[2]}\ns_add_u32 s{t0}, s{t0}, s{t1}\ns_mul_i32 s{t1}, s{sI}, {rot[0]}\ns_add_u32 s{t0}, s{t0}, s{t1}")
        a(f"s_mul_i32 s{t1}, s{t0}, 7282\ns_lshr_b32 s{t1}, s{t1}, 16\ns_mul_i32 s{t1}, s{t1}, 9\ns_sub_u32 s{dst}, s{t0}, s{t1}")
    def mlp_setup():
        a(f"v_add_u32 v{vB2}, 65536, v{vL16}\nv_add_u32 v{vB3}, 131072, v{vL16}")
        a(f"v_lshlrev_b32 v{vO8}, 3, v{vL}\nv_add_u32 v{vO8}, {EX+8192}, v{vO8}")
        a(f"s_lshl_b32 s{t0}, s{sT}, 12\ns_add_u32 s{t0}, s{t0}, {R1}\nv_add_u32 v{vHw}, s{t0}, v{vL16}")
        a(f"s_lshr_b32 s{t0}, s{sT}, 1\ns_lshl_b32 s{t0}, s{t0}, 12\ns_and_b32 s{t1}, s{sT}, 1\ns_lshl_b32 s{t1}, s{t1}, 3\ns_add_u32 s{t0}, s{t0}, s{t1}\ns_add_u32 s{t0}, s{t0}, {R1+32768}\nv_add_u32 v{vHw2}, s{t0}, v{vL16}")
        a(f"v_lshrrev_b32 v{T}, 2, v{vM}\nv_lshlrev_b32 v{T}, 13, v{T}\nv_lshl_add_u32 v{T}, v{vG}, 6, v{T}\nv_and_b32 v{T+1}, 3, v{vL}\nv_lshl_add_u32 v{T}, v{T+1}, 4, v{T}")
        a(f"s_lshl_b32 s{t0}, s{sJ}, 10\ns_lshl_b32 s{t1}, s{sT}, 8\ns_add_u32 s{t0}, s{t0}, s{t1}")
        a(f"s_mul_i32 s{t1}, s{sI}, {9*65536}\ns_add_u32 s{t0}, s{t0}, s{t1}\ns_add_u32 s{t0}, s{t0}, {PART}\nv_add_u32 v{vSt}, s{t0}, v{T}\nv_add_u32 v{vSt2}, 32768, v{vSt}")

    class Stream:
        def reg(s, u): return s.map[u]
        def release(s): s.free.append(s.map[s.nu]); s.nu += 1
        def __init__(s, n, depth): s.n = n; s.nl = 0; s.nu = 0; s.base = 0; s.D = depth; s.hook = {}; s.limit = n; s.blk = 0; s.free = [A+4*k for k in range(depth)]; s.map = {}
        def load(s):
            if s.nl >= min(s.n, s.limit) or not s.free: return
            if s.nl in s.hook: s.hook.pop(s.nl)()
            s.bump(); off = s.nl*1024; s.map[s.nl] = s.free.pop(0)
            a.vmem(f"buffer_load_dwordx4 {vr(s.reg(s.nl),4)}, v{vL16}, {S(WS)}, s{sOff} offen offset:{off-s.base} sc1", ('A', s.nl))
            s.nl += 1
        def bump(s):
            off = s.nl*1024
            if s.blk and s.nl < s.n and s.nl % s.blk == 0 and off != s.base:
                a(f"s_add_u32 s{sOff}, s{sOff}, {off-s.base}\ns_cmp_eq_u32 s{sOff}, s{s.wrap+1}\ns_cselect_b32 s{sOff}, s{s.wrap}, s{sOff}"); s.base = off; return True
            if s.nl < min(s.n, s.limit) and off - s.base >= 4096: a(f"s_add_u32 s{sOff}, s{sOff}, {off-s.base}"); s.base = off; return True
            return False
    def rdB(ks, si, ts=range(4), bufs=(64, 80)):
        kind, k = ks[si]
        for t in ts:
            r = bufs[si % len(bufs)] + 4*t
            if kind == 'x': a.ds(f"ds_read_b64 {vr(r,2)}, v{vO8} offset:{t*512}", ('B', si)); continue
            o = {'X': R2+t*18432+k*1024, 'N': R1+t*18432+k*1024, 'h': R1+k*4096+t*1024, 'o': EX+k*4096+t*1024}[kind]
            a.ds(f"ds_read_b128 {vr(r,4)}, v{[vL16,vB2,vB3][o>>16]} offset:{o&65535}", ('B', si))
    def mpass(st, ks, n, bars=(), prio=1, items=None, after=None, add={}, bufs=(64, 80)):
        if prio: a(f"s_setprio {prio}")
        owed = 0; la = len(bufs)-1
        assert la == 1 or not bars
        for q_ in range(1, la): rdB(ks, q_, bufs=bufs)
        for si, (kind, k) in enumerate(ks):
            its = items(si) if items else [(p, 2*(p & 1), 16, False, False, bool(p & 1) or p == n-1) if kind == 'x' else (p, 0, 32, False, si == 0, True) for p in range(n)]
            q = []
            if si in add: st.free += add[si]
            if si+la < len(ks):
                if si+1 in bars:
                    def test(si=si):
                        ok = a.label('hok')
                        a.wait(lg=lambda t: t == 'hf')
                        a(f"v_readfirstlane_b32 s3, v63\ns_cmp_ge_u32 s3, 4\ns_cbranch_scc1 {ok}")
                        sv = list(a.lg); lds_wait(21+bars.index(si+1)); a.lg = sv
                        a(f"{ok}:")
                    q.append(test)
                per = 2 if n <= 2 else 1
                for t in range(0, 4, per): q.append(lambda t=t, si=si: rdB(ks, si+la, range(t, t+per), bufs))
                if si+2 in bars: q.append(lambda si=si: a.ds(f"ds_read_b32 v63, v{vLC} offset:{4*(21+bars.index(si+2))}", 'hf'))
            for ii, (p, ro, K, sw, zero, frees) in enumerate(its):
                u = st.nu
                us = [('A', u+x) for x in range(wst)] if ii % wst == 0 else [('A', u)]
                a.wait(vm=lambda t: t in us, lg=(lambda t: t == ('B', si)) if ii == 0 else None)
                r = st.reg(u)+ro
                for t in range(4):
                    tt = 3-t if snake and ii & 1 else t
                    d = ACC+16*p+4*tt; b = bufs[si % len(bufs)] + 4*tt
                    if sw: mfma(d, b, r, None if zero else d, K)
                    else: mfma(d, r, b, None if zero else d, K)
                    if t == 0 and owed and st.nl < min(st.n, st.limit): st.load(); owed -= 1
                    elif t < 3:
                        if t == 2 and st.bump(): pass
                        elif q: q.pop(0)()
                        elif t == 1: st.load()
                if frees:
                    st.release(); owed += 1
                    if after: after()
            while q: q.pop(0)()
        while owed: st.load(); owed -= 1
        if prio: a("s_setprio 0")
    K3 = [('X', s) for s in range(18)]
    def h_write(w, bar, pre=None, post=None):
        for wi, (kind, p0, step) in enumerate(w):
            for tt in range(4):
                if pre and 4*wi+tt in pre: pre[4*wi+tt]()
                if kind == 'pair':
                    P = T+8+4*(tt & 1)
                    gelu_quad(ACC+16*p0+4*tt, P, tt); gelu_quad(ACC+16*(p0+1)+4*tt, P+2, tt)
                    a.ds(f"ds_write_b128 v{vHw}, {vr(P,4)} offset:{step*4096+tt*1024}", 'w')
                else:
                    P = T+8+2*(tt & 1); gelu_quad(ACC+16*p0+4*tt, P, tt)
                    o = step*4096+tt*1024-32768
                    if o < 0:
                        a(f"v_add_u32 v{T+16}, {o & 0xffffffff:#x}, v{vHw2}"); a.ds(f"ds_write_b64 v{T+16}, {vr(P,2)}", 'w')
                    else: a.ds(f"ds_write_b64 v{vHw2}, {vr(P,2)} offset:{o}", 'w')
            if post and wi in post: post[wi]()
            if bar and hflag: lds_signal(21+wi)
            elif bar: a.wait(lg='all'); a("s_barrier")
        a.wait(lg='all')
    sM0, sM1, sP1, sP2, sPh = 84, 86, 88, 89, 90; vOw = 42
    def own_setup():
        a(f"s_and_b32 s{t0}, s{sJ}, 3\nv_lshrrev_b32 v{T}, 2, v{vM}\nv_cmp_eq_u32 vcc, s{t0}, v{T}\nv_mov_b32 v{T+1}, {BIG:#x}")
        a(f"s_cmp_lt_u32 s{sJ}, 4\ns_cselect_b64 {sr(sM0,2)}, vcc, 0\ns_cselect_b64 {sr(sM1,2)}, 0, vcc")
        a(f"v_cndmask_b32 v{vSt}, v{vSt}, v{T+1}, {sr(sM0,2)}\nv_cndmask_b32 v{vSt2}, v{vSt2}, v{T+1}, {sr(sM1,2)}")
        a(f"s_lshl_b32 s{t0}, s{sT}, 8\ns_add_u32 s{t0}, s{t0}, {R2}\nv_and_b32 v{T}, 3, v{vL}\nv_lshl_add_u32 v{T}, v{vG}, 2, v{T}\nv_lshl_add_u32 v{T}, v{T}, 4, s{t0}\nv_add_u32 v{T+1}, {R2+16384}, v{vL16}")
        a(f"v_cndmask_b32 v{vOw}, v{T+1}, v{T}, {sr(sM0,2)}\nv_cndmask_b32 v{vOw+1}, v{T+1}, v{T}, {sr(sM1,2)}")
    def p_stores(Ps, ph, last, hooks={}, pace=pace, upto=99):
        n = 0
        if -1 in hooks: hooks[-1]()
        for p, P_ in enumerate(Ps):
            a(f"s_mov_b32 s{sStO}, {P_*65536}")
            for h in range(2):
                x = ACC+16*p+8*h; P = T+8*(p & 1)+4*h
                for i in range(4): cvt(P+i, x+2*i, x+2*i+1)
                a.vmem(f"buffer_store_dwordx4 {vr(P,4)}, v{vSt2 if h else vSt}, {S(WS)}, s{sStO} offen sc1", ('st', n))
                if own: a.ds(f"ds_write_b128 v{vOw+h}, {vr(P,4)} offset:{P_*1024}", 'w')
                if n in hooks: hooks[n]()
                if pace >= 0 and not last and n < upto: a.wait(vm=lambda t: t == ('st', n-pace))
                n += 1
        cnt_off(t0, C_PART, sI, 4, ph); a.wait(vm=lambda t: t == ('st', n-1)); arrive(32+ph, t0)
    RL = 96; RS = 140; SEL = 32
    def sel_setup(T=T):
        a(f"v_and_b32 v{T}, 3, v{vM}\nv_cmp_eq_u32 vcc, v{T}, v{vG}\nv_bfe_u32 v{T}, v{vM}, 2, 1\nv_lshrrev_b32 v{T+1}, 3, v{vM}\nv_lshl_add_u32 v{T}, v{T}, 1, v{T+1}\nv_cndmask_b32 v{T}, 7, v{T}, vcc\nv_mov_b32 v{T+1}, 0x3f80")
        for p in range(4): a(f"v_cmp_eq_u32 vcc, {p}, v{T}\nv_cndmask_b32 v{SEL+p}, 0, v{T+1}, vcc\nv_lshlrev_b32 v{SEL+4+p}, 16, v{SEL+p}")
    def red_prep(sP, RX, vA_, T=T):
        vB_, vC_ = T+1, T+2
        a(f"v_bfe_u32 v{T+4}, v{vL}, 2, 2\nv_lshrrev_b32 v{T+5}, 5, v{vL}\nv_lshl_add_u32 v{T+4}, v{T+4}, 1, v{T+5}\ns_lshl_b32 s{t2}, s{sP}, 3\nv_add_u32 v{T+4}, s{t2}, v{T+4}")
        a(f"s_and_b32 s{t2}, s{sJ}, 3\ns_lshl_b32 s{t2}, s{t2}, 2\nv_and_b32 v{T+5}, 3, v{vL}\nv_add_u32 v{T+5}, s{t2}, v{T+5}")
        a(f"s_lshr_b32 s{t2}, s{sJ}, 2\ns_lshl_b32 s{t2}, s{t2}, 1\ns_lshl2_add_u32 s{t2}, s{sI}, s{t2}\nv_and_b32 v{T+6}, 1, v{vG}\nv_add_u32 v{T+6}, s{t2}, v{T+6}")
        a(f"v_lshl_add_u32 v{T+7}, v{T+6}, 4, v{T+5}\nv_mul_u32_u24 v{T+7}, 1152, v{T+7}\nv_lshl_add_u32 v{vA_}, v{T+4}, 4, v{T+7}")
        a.vmem(f"buffer_load_dwordx4 {vr(RX,4)}, v{vA_}, {S(SX)}, 0 offen", 'rx')
        a(f"v_mul_u32_u24 v{T+7}, 57, v{T+4}\nv_lshrrev_b32 v{T+7}, 9, v{T+7}\nv_mul_u32_u24 v{T+8}, 9, v{T+7}\nv_sub_u32 v{T+8}, v{T+4}, v{T+8}")
        a(f"v_cmp_eq_u32 vcc, 8, v{T+8}\nv_and_b32 v{T+9}, 1, v{T+8}\nv_lshl_add_u32 v{T+9}, v{T+7}, 1, v{T+9}\nv_lshrrev_b32 v{T+10}, 1, v{T+8}")
        a(f"v_lshl_add_u32 v{T+9}, v{T+9}, 2, v{T+10}\nv_lshl_add_u32 v{T+9}, v{T+9}, 4, v{T+5}\nv_lshlrev_b32 v{T+9}, 4, v{T+9}")
        a(f"v_lshl_add_u32 v{T+10}, v{T+7}, 5, v{T+5}\nv_lshlrev_b32 v{T+10}, 3, v{T+10}\nv_add_u32 v{T+10}, 16384, v{T+10}")
        a(f"v_cndmask_b32 v{T+9}, v{T+9}, v{T+10}, vcc\nv_mov_b32 v{T+11}, 0x80\nv_cndmask_b32 v{T+11}, 8, v{T+11}, vcc")
        a(f"v_mul_u32_u24 v{T+6}, 18432, v{T+6}\nv_add_u32 v{vB_}, v{T+9}, v{T+6}\nv_add_u32 v{vC_}, v{vB_}, v{T+11}")
        a(f"s_mov_b32 s{t2}, {X1}")
        a.vmem(f"buffer_load_dwordx2 {vr(RX+4,2)}, v{vB_}, {S(WS)}, s{t2} offen sc1", 'rx')
        a.vmem(f"buffer_load_dwordx2 {vr(RX+6,2)}, v{vC_}, {S(WS)}, s{t2} offen sc1", 'rx')
    def red_loads(sP, ph, RL=96, RS=140):
        a(f"s_mul_i32 s{t2}, s{sI}, 9\ns_add_u32 s{t2}, s{t2}, s{sP}\ns_lshl_b32 s{t2}, s{t2}, 16\ns_lshl_b32 s{t3}, s{sJ}, 13\ns_add_u32 s{t2}, s{t2}, s{t3}\ns_add_u32 s{t2}, s{t2}, {PART}")
        srd(SA_, pOUT, 2359296)
        cnt_off(t0, C_PART, sI, 4, ph or 0)
        if ph is None: a(f"s_add_u32 s{t0}, s{t0}, s{sPh}")
        if own: a(f"s_lshl_b32 s{t1}, s{sP}, 10\ns_add_u32 s{t1}, s{t1}, {R2}\nv_add_u32 v{RS+8}, s{t1}, v{vL16}")
        a(f"s_lshl_b32 s{t3}, s{sJ}, 10")
        poll(t0, 8)
        for k in range(8):
            if own and k == 0: a.ds(f"ds_read_b128 {vr(RL,4)}, v{RS+8}", 'own'); continue
            if k: a(f"s_add_u32 s{t3}, s{t3}, 1024\ns_and_b32 s{t3}, s{t3}, 8191")
            a(f"s_add_u32 s{t1}, s{t2}, s{t3}")
            a.vmem(f"buffer_load_dwordx4 {vr(RL+4*k,4)}, v{vL16}, {S(WS)}, s{t1} offen sc1", ('p', k))
    def red_sum(RX, vA_, RL=96, RS=140):
        a.wait(vm=lambda t: t == 'rx')
        for d in range(4):
            a(f"v_lshlrev_b32 v{RS+2*d}, 16, v{RX+d}\nv_and_b32 v{RS+2*d+1}, s{sMask}, v{RX+d}\nv_lshlrev_b32 v{RS+9}, 16, v{RX+4+d}\nv_and_b32 v{RS+10}, s{sMask}, v{RX+4+d}")
            a(f"v_add_f32 v{RS+2*d}, v{RS+2*d}, v{RS+9}\nv_add_f32 v{RS+2*d+1}, v{RS+2*d+1}, v{RS+10}")
        for k in range(8):
            a.wait(vm=lambda t: t == ('p', k), lg=lambda t: t == 'own')
            mfma(RS, SEL, RL+4*k, RS); mfma(RS+4, SEL+4, RL+4*k, RS+4)
        for d in range(4): cvt(RX+d, RS+2*d, RS+2*d+1)
        a.vmem(f"buffer_store_dwordx4 {vr(RX,4)}, v{vA_}, {S(SA_)}, 0 offen {osc}", 'o')
    def mlp(me, st, hpre, hpost):
        ps = PL.passes; ng3 = len(g3); pre = True
        if me == 1 and sg4: st.hook[st.n-1-sg4[0]] = lambda: lds_signal(29)
        if me == 0 and sg5: st.hook[st.n-1-sg5[0]] = lambda: lds_signal(30)
        for pi, (grp, g, Ps) in enumerate(ps):
            if grp == me:
                ks = K3 if g == 3 else PL.k4
                if not pre: rdB(ks, 0)
                bars = ()
                if pi == ng3: bars = tuple(PL.k4.index(('h', w[2])) for w in PL.hw[-1])
                add = {}
                if pi == ng3: st.limit = st.n; add = {xa0: [160, 164, 168, 172, 240, 244, 248, 252][:xa]}
                bufs = (64, 80)
                if deepb and len(Ps) == 2: bufs = (64, 80, 208 if me else 224)
                if len(Ps) == 1: bufs = (64, 80, 192, 208)
                mpass(st, ks, len(Ps), bars, add=add, bufs=bufs)
            else:
                if pi >= 1:
                    _, pg, pPs = ps[pi-1]
                    if pg == 3: a(f"s_setprio {eprio}"); h_write(PL.hw[pi-1], pi == ng3, hpre, hpost); a("s_setprio 0")
                    if pi == ng3:
                        st.free += [160, 164, 168, 172, 224, 228, 232, 236, 240, 244, 248, 252][:xb]
                        for _ in range(40): st.load()
                    if pg == 4 and own and pi <= ng3+2: own_setup()
                    if len(g4) == 3:
                        if pi == ng3+1:
                            a(f"s_setprio {sprio}")
                            a(f"s_add_u32 s{sP1}, s{sT}, 4\ns_cmp_eq_u32 s{sT}, 3\ns_cselect_b32 s{sPh}, 2, 1\ns_mul_i32 s{sPh}, s{sPh}, {CSP}")
                            if sg4:
                                sel_setup(48); red_prep(sP1, 52, 40)
                                p_stores(pPs, 0, False, {sg4[1]-1: lambda: lds_wait(29, sleep=1)}, pace, sg4[1])
                            else: p_stores(pPs, 0, False, {1: lambda: sel_setup(48), 7: lambda: red_prep(sP1, 208, 40, 48)})
                            stamp(34)
                        if pi == ng3+2:
                            a(f"s_setprio {tprio}")
                            if sg5:
                                sel_setup(48); red_prep(sT, 240, 40, 48)
                                p_stores(pPs, 1, False, {sg5[1]-1: lambda: lds_wait(30, sleep=1), lh: lambda: red_loads(sT, 0)}, pace2, sg5[1])
                            else: p_stores(pPs, 1, False, {1: lambda: (red_prep(sT, 240, 40, 48), sel_setup(48)), lh: lambda: red_loads(sT, 0)}, pace2)
                            stamp(30)
                            a(f"s_mov_b32 s{sP2}, 8\ns_cmp_lg_u32 s{sT}, 0\ns_cbranch_scc1 L_nop8")
                            sv = list(a.vm); red_prep(sP2, 248, 41); a.vm = sv
                            a("L_nop8:")
                            red_sum(240, 40)
                    else:
                        if pi == ng3+1: p_stores(pPs, 0, False)
                        if pi == ng3+2:
                            a(f"s_setprio {tprio}")
                            p_stores(pPs, 1, False, {1: lambda: (red_prep(sT, 208, 40, 48), sel_setup(48))}, pace2)
                            red_loads(sT, 0, 176, 48); red_sum(208, 40, 176, 48)
                            a("s_setprio 0")
                        if pi == ng3+3:
                            a(f"s_setprio {tprio}")
                            a(f"s_add_u32 s{sP1}, s{sT}, 4\ns_cmp_ge_u32 s{sT}, 2\ns_cselect_b32 s{sPh}, 2, 1\ns_mul_i32 s{sPh}, s{sPh}, {CSP}")
                            p_stores(pPs, 2, False, {1: lambda: (red_prep(sP1, 208, 40, 48), sel_setup(48))}, pace3)
                            stamp(30)
                            red_loads(sP1, None)
                            a(f"s_mov_b32 s{sP2}, 8\ns_cmp_lg_u32 s{sT}, 0\ns_cbranch_scc1 L_nop8")
                            sv = list(a.vm); red_prep(sP2, 248, 41); a.vm = sv
                            a("L_nop8:")
                            red_sum(208, 40)
                if pi+1 < len(ps):
                    pre = pi+1 != ng3
                    if pre and pi >= 1: rdB(K3 if ps[pi+1][1] == 3 else PL.k4, 0)
            if pi+1 < len(ps): a("s_barrier")
            stamp(20+pi)
        assert g4 in ((4, 3, 2), (4, 2, 2, 1)) and len(g3) == 2
        if me == ps[-1][0]:
            p_stores(ps[-1][2], len(g4)-1, True); stamp(30)
            if len(g4) == 3: red_loads(sP1, None); stamp(31); red_sum(52 if sg4 else 208, 40)
        else:
            a(f"s_cmp_lg_u32 s{sT}, 0\ns_cbranch_scc1 L_nor8")
            a.wait(vm='all'); red_loads(sP2, len(g4)-1); stamp(31); red_sum(248, 41)
            a("L_nor8:")
        stamp(33)
    def stream_base(me):
        a(f"s_mul_i32 s{sOff}, s{sJ}, {PL.slice}\ns_mul_i32 s{t0}, s{sT}, {PL.S[me]}\ns_add_u32 s{sOff}, s{sOff}, s{t0}\ns_add_u32 s{sOff}, s{sOff}, {WM+(4*PL.S[0] if me else 0)}")
    def chk_issue(base, idx, so, sv_):
        cnt_off(so, base, idx)
        a(f"s_mov_b32 s{sv_}, 0\ns_atomic_add s{sv_}, {sr(pCNT,2)}, s{so} glc")
    def chk_test(so, sv_, target):
        ok = a.label('chkok')
        a.wait(lg='all')
        a(f"s_cmp_ge_u32 s{sv_}, {target}\ns_cbranch_scc1 {ok}")
        poll(so, target, sleep=8)
        a(f"{ok}:")

    vXe, vXo, vXw, vTr, vHs, vHx, vSig, vR, vNB, vK0, vK1, vIr, vL8, vSs, vSl = 40, 41, 42, 44, 48, 49, 50, 52, 54, 56, 57, 58, 59, 60, 61
    vX0 = 62
    RING = 96; AC5 = 124; SUM = 144; SQ = 148; ONES = 152; RES = 156; GT = 64; PK = 24
    sXo, sXm = 96, 97
    sC, sMb, sE, sMe = 92, 93, 94, 95
    vW = 36; vHs2 = 34; vRs = 84; sPh9 = 74; sRot = 83; sRun = 24; sEnd = 25
    def w_off():
        a(f"s_mul_i32 s{sC}, s{sJ}, 144\ns_min_u32 s{sE}, s{sT}, 2\ns_lshl_b32 s{t0}, s{sT}, 6")
        for k in range(3):
            if k < 2: a(f"v_add_u32 v{T}, s{t0}, v{vL}")
            if k == 1: a(f"v_add_u32 v{T}, 256, v{T}")
            if k == 2: a(f"v_add_u32 v{T}, 512, v{vL}")
            R = T+2
            a(f"v_mul_u32_u24 v{T+1}, 7282, v{T}\nv_lshrrev_b32 v{R}, 16, v{T+1}\nv_mul_u32_u24 v{T+1}, 9, v{R}\nv_sub_u32 v{T+3}, v{T}, v{T+1}")
            a(f"v_bfe_u32 v{T}, v{R}, 1, 2\nv_and_b32 v{T+1}, 1, v{R}\nv_lshl_add_u32 v{T}, v{T+1}, 4, v{T}\nv_and_b32 v{T+1}, 40, v{R}\nv_add_u32 v{T}, v{T}, v{T+1}\nv_bfe_u32 v{T+1}, v{R}, 4, 1\nv_lshl_add_u32 v{T}, v{T+1}, 2, v{T}")
            a(f"v_mul_u32_u24 v{T}, 1152, v{T}\nv_lshl_add_u32 v{vW+k}, v{T+3}, 4, v{T}")
        a(f"s_lshl_b32 s{sMb}, s{sT}, 10\ns_add_u32 s{sMb}, s{sMb}, {R2}\ns_mul_i32 s{sMe}, s{sE}, 9216\ns_add_u32 s{sMe}, s{sMe}, {R2+8192}")
        if not wa: rot_calc(0)
        sr_ = sRot if wa else 0
        a(f"s_add_u32 s{t0}, s{sE}, s{sr_}\ns_sub_u32 s{t1}, s{t0}, 9\ns_min_u32 s{t0}, s{t0}, s{t1}\ns_mul_i32 s{t0}, s{t0}, 73728\ns_add_u32 s{sE}, s{t0}, s{sC}")
        a(f"s_mul_i32 s{sRun}, s{sr_}, 73728\ns_add_u32 s{sRun}, s{sRun}, s{sC}\ns_add_u32 s{sEnd}, s{sC}, 663552")
        srd(SB_, pW1, 663552)
    def w_dma1(n):
        stage, q = divmod(n, 7)
        if q < 6:
            B = 3*stage+(q >> 1); k = q & 1; so = sRun
            a(f"s_add_u32 m0, s{sMb}, {B*9216+k*4096}")
            if k == 0 and B: a(f"s_add_u32 s{so}, s{so}, 73728\ns_cmp_eq_u32 s{so}, s{sEnd}\ns_cselect_b32 s{so}, s{sC}, s{so}")
        else:
            k = 2; so = sE
            a(f"s_add_u32 m0, s{sMe}, {stage*3*9216}")
            if stage: a(f"s_add_u32 s{so}, s{so}, {3*73728}\ns_cmp_ge_u32 s{so}, s{sEnd}\ns_cselect_b32 s{sTo}, 663552, 0\ns_sub_u32 s{so}, s{so}, s{sTo}")
        a.vmem(f"buffer_load_dwordx4 v{vW+k}, {S(SB_)}, s{so} offen lds", ('w1', stage))
    a(f"s_lshl2_add_u32 s{sTT}, s{sI}, s{sT}")
    a(f"v_lshrrev_b32 v{T}, 3, v{vL}\nv_and_b32 v{T+1}, 7, v{vL}\nv_xor_b32 v{T+1}, v{T+1}, v{vG}\nv_mul_u32_u24 v{T}, 1152, v{T}\nv_lshl_add_u32 v{vX0}, v{T+1}, 4, v{T}")
    a(f"v_xor_b32 v{vX0+1}, 64, v{vX0}\nv_add_u32 v{vX0+1}, {8*1152}, v{vX0+1}")
    a(f"s_mul_i32 s{sXo}, s{sTT}, 18432\ns_mul_i32 s{sXm}, s{sT}, 18432\ns_add_u32 s{sXm}, s{sXm}, {R1}")
    a(f"v_mov_b32 v{T+8}, 0\nv_lshl_add_u32 v{T+9}, v{vL}, 2, v{vLC}\nds_write_b32 v{T+9}, v{T+8}")
    rot_calc(sRot)
    a(f"s_lshl_b32 s{sPh9}, s{sRot}, 7")
    for v in range(1, 9): a(f"s_add_u32 s{sPh9+v}, s{sPh9+v-1}, 128\ns_cmp_eq_u32 s{sPh9+v}, 1152\ns_cselect_b32 s{sPh9+v}, 0, s{sPh9+v}")
    a(f"v_add_u32 v{vX0}, s{sXo}, v{vX0}\nv_add_u32 v{vX0+1}, s{sXo}, v{vX0+1}")
    a("s_setprio 2")
    a("s_waitcnt lgkmcnt(0)\ns_barrier")
    srd(SX, pX, 2359296); srd(WS, pWS, 0x10000000)
    stamp(0)
    def pub_addr(sh):
        vHs, vHx = (48, 49) if sh else (vHs2, vHs2+1)
        a(f"s_lshl_b32 s{t4}, s{sTT}, 4")
        if sh: a(f"s_add_u32 s{t4}, s{t4}, s{t2}")
        a(f"v_add_u32 v{T}, s{t4}, v{vM}")
        if sh: a(f"v_cmp_gt_u32 {sr(sTab+8,2)}, s{sTab+10}, v{T}\nv_and_b32 v{T}, 0x7ff, v{T}")
        a(f"v_lshrrev_b32 v{T+1}, 4, v{T}\nv_and_b32 v{T}, 15, v{T}\nv_mul_u32_u24 v{T+1}, 18432, v{T+1}\nv_lshl_add_u32 v{T}, v{vG}, 4, v{T}")
        a(f"s_lshl_b32 s{t4}, s{sJ}, 11\nv_lshl_add_u32 v{T+2}, v{T}, 4, v{T+1}\nv_add_u32 v{vHs}, s{t4}, v{T+2}")
        a(f"s_lshl_b32 s{t4}, s{sJ}, 8\ns_add_u32 s{t4}, s{t4}, 16384\nv_lshl_add_u32 v{T+2}, v{T}, 3, v{T+1}\nv_add_u32 v{T+2}, s{t4}, v{T+2}")
        a(f"v_cmp_gt_u32 vcc, 2, v{vG}\nv_mov_b32 v{T+3}, {BIG:#x}\nv_cndmask_b32 v{vHx}, v{T+3}, v{T+2}, vcc")
    def setup2():
        pub_addr(False)
        mlp_setup()
        a(f"s_mul_i32 s{t2}, s{sJ}, 9\ns_lshl_b32 s{t3}, s{sRot}, 3\ns_sub_u32 s{t2}, s{t2}, s{t3}\nv_lshl_add_u32 v{T+5}, v{vM}, 4, s{sXm}\nv_lshl_add_u32 v{T}, v{vG}, 1, s{t2}")
        for q in range(2): a(f"v_add_u32 v{T+1}, {q}, v{T}\nv_add_u32 v{T+2}, 72, v{T+1}\nv_min_u32 v{T+1}, v{T+1}, v{T+2}\nv_lshl_add_u32 v{vRs+q}, v{T+1}, 8, v{T+5}")
        a(f"s_add_u32 s{t2}, s{t2}, 8\ns_add_u32 s{t3}, s{t2}, 72\ns_min_u32 s{t2}, s{t2}, s{t3}\ns_lshl_b32 s{t2}, s{t2}, 8\nv_and_b32 v{T}, 1, v{vG}\nv_lshl_add_u32 v{T}, v{T}, 3, v{T+5}\nv_add_u32 v{vRs+2}, s{t2}, v{T}")
        a(f"v_and_b32 v{T}, 7, v{vL}\nv_lshl_add_u32 v{T}, v{vG}, 3, v{T}\nv_lshlrev_b32 v{T}, 4, v{T}\nv_add_u32 v50, {R2+4096}, v{T}\nv_add_u32 v51, {9*4608}, v50")
    def setup1():
        if wa: w_off()
        a(f"v_lshrrev_b32 v{T}, 1, v{vM}\nv_xor_b32 v{T}, v{T}, v{vG}\nv_lshlrev_b32 v{T}, 4, v{T}\nv_lshl_add_u32 v{T}, v{vM}, 7, v{T}")
        a(f"v_add_u32 v{vXe}, s{sXm}, v{T}\nv_xor_b32 v{vXo}, 64, v{vXe}\nv_add_u32 v{vXw}, s{sXm}, v{vL16}")
        for k in range(4): a(f"v_mov_b32 v{ONES+k}, 0x3f803f80")
        a(f"v_bfe_u32 v{T}, v{vL}, 2, 3\nv_lshrrev_b32 v{T+1}, 5, v{vL}\nv_lshl_add_u32 v{T}, v{T}, 1, v{T+1}\nv_mul_u32_u24 v{T}, 144, v{T}\nv_add_u32 v{T}, {R2}, v{T}")
        a(f"v_and_b32 v{T+1}, 3, v{vL}\nv_lshl_add_u32 v{vTr}, v{T+1}, 3, v{T}\nv_and_b32 v{T+1}, 1, v{vL}\nv_lshl_add_u32 v{vTr+2}, v{T+1}, 3, v{T}")
        a(f"v_add_u32 v{vTr+1}, {9*4608}, v{vTr}\nv_add_u32 v{vTr+3}, {9*4608}, v{vTr+2}")
        a(f"v_lshlrev_b32 v{T}, 2, v{vG}\nv_sub_u32 v{T}, v{vM}, v{T}")
        for k in range(4): a(f"v_cmp_eq_u32 {sr(sTab+2*k,2)}, {k}, v{T}")
        a(f"v_cmp_gt_u32 vcc, 4, v{T}\nv_lshlrev_b32 v{T+1}, 3, v{vM}\nv_mov_b32 v{T+2}, {BIG:#x}\nv_cndmask_b32 v{vSs}, v{T+2}, v{T+1}, vcc\nv_lshl_add_u32 v{vSl}, v{vG}, 8, v{T+1}")
        a(f"s_lshr_b32 s{t2}, s{sJ}, 2\ns_add_u32 s{t2}, s{t2}, 1\ns_sub_u32 s{t3}, 0, s{t2}\ns_bitcmp1_b32 s{sJ}, 1\ns_cselect_b32 s{t2}, s{t3}, s{t2}\ns_cselect_b32 s{t3}, -1, 1")
        a(f"s_mov_b32 s{sTab+10}, 2048")
        pub_addr(True)
        a(f"s_add_u32 s{t3}, s{t3}, s{sTT}\ns_and_b32 s{t3}, s{t3}, 127")
        cnt_off(sTab+12, C_H, t3); cnt_off(sTab+13, C_H, sTT); cnt_base()
        a(f"v_lshlrev_b32 v{vL8}, 3, v{vL}")
    fill = a.capture(setup1)
    def xrd(s): a.ds(f"ds_read_b128 {vr(XF+4*s,4)}, v{vXo if s&1 else vXe} offset:{(s>>1)*2048}", ('xf', s))
    def xst(s):
        a.wait(lg=lambda t: t == ('xf', s))
        mfma(SUM, ONES, XF+4*s, SUM if s else None); mfma(SQ, XF+4*s, XF+4*s, SQ if s else None)
    for n in range(18):
        a(f"s_add_u32 m0, s{sXm}, {n*1024}")
        a.vmem(f"buffer_load_dwordx4 v{vX0+(n&1)}, {S(SX)}, s{sPh9+(n>>1)} offen lds", ('x', n >> 1))
        if n == xsig: lds_signal(19)
        if n >= xfill:
            for _ in range(3):
                if fill: a(fill.pop(0))
    a(f"s_setprio {aprio0}")
    while fill: a(fill.pop(0))
    stamp(14)
    nw = [0]
    def wd(k=1):
        for _ in range(k):
            if wa and nw[0] < 21: w_dma1(nw[0]); nw[0] += 1
    if not dlate: wd(dstart)
    fill = a.capture(setup2)
    for lam in range(9):
        a.wait(vm=lambda t: t == ('x', lam))
        xrd(2*lam); xrd(2*lam+1)
        if lam >= 2: xst(2*lam-4); xst(2*lam-3)
        for _ in range(2):
            if fill: a(fill.pop(0))
        if lam % 3 == 2 and not dlate: wd()
    for s in range(14, 18): xst(s)
    while fill: a(fill.pop(0))
    stamp(1)
    def diag(dst):
        a(f"v_cndmask_b32 v{dst}, 0, v{SQ}, {sr(sTab,2)}")
        for k in range(1, 4): a(f"v_cndmask_b32 v{dst}, v{dst}, v{SQ+k}, {sr(sTab+2*k,2)}")
    diag(T)
    a(f"v_mov_b32 v{T+1}, v{T}\nv_permlane16_swap_b32 v{T}, v{T+1}\nv_add_f32 v{T}, v{T}, v{T+1}\nv_mov_b32 v{T+1}, v{T}\nv_permlane32_swap_b32 v{T}, v{T+1}\nv_add_f32 v{T}, v{T}, v{T+1}")
    ln_stats(SUM, T, vR, vNB, vK0)
    def st_issue(k): a.ds(f"ds_read_b32 v63, v{vLC} offset:{64+4*k}", 'stf')
    def st_test(k):
        ok = a.label('stok')
        a.wait(lg=lambda t: t == 'stf')
        a(f"v_readfirstlane_b32 s3, v63\ns_cmp_ge_u32 s3, 4\ns_cbranch_scc1 {ok}")
        sv = list(a.lg); lds_wait(16+k); a.lg = sv
        a(f"{ok}:")
    def xn_write(s): a.ds(f"ds_write_b128 v{vXw}, {vr(XF+4*s,4)} offset:{s*1024}", 'w')
    def xn_done():
        lds_signal(7)
        for q in range(2): a.ds(f"ds_read_b128 {vr(RES+4*q,4)}, v{vRs+q}", 'res')
        a.ds(f"ds_read_b64 {vr(RES+8,2)}, v{vRs+2}", 'res')
    bounds = [10*sum(stg[:k]) for k in range(1, len(stg))]
    for s in range(18):
        if nw[0] < dn and s >= dlate: wd()
        if s == f0pos and wa and not dlate: a.wait(vm=lambda t: t == ('w1', 0)); lds_signal(16)
        if s == 16 and not (wa or xne): st_issue(0)
        normalize(XF+4*s, vR, vNB, pk1)
        if wa or xne: xn_write(s)
    wd(dn-nw[0])
    if wa and dlate: a.wait(vm=lambda t: t == ('w1', 0)); lds_signal(16)
    if wa or xne: xn_done(); st_issue(0)
    stamp(2)
    def rdW(u):
        s, p = divmod(u, 5); r = RING+4*(u % 7)
        for hf in range(2):
            a.ds(f"ds_read_b64_tr_b16 {vr(r+2*hf,2)}, v{vTr+(2 if p==4 else 0)+(s>=9)} offset:{(s%9)*4608+hf*2304+32*p}", ('W', u))
    def tile_load(s, tag):
        if s and s % 4 == 0: a(f"s_add_u32 s{sXo}, s{sXo}, 4096")
        if s < 16: a.vmem(f"buffer_load_dwordx4 {vr(XF+4*s,4)}, v{vL16}, {S(WS)}, s{sXo} offen offset:{(s&3)*1024} sc1", (tag, s))
        else:
            for hf in range(2): a.vmem(f"buffer_load_dwordx2 {vr(XF+4*s+2*hf,2)}, v{vL8}, {S(WS)}, s{sXo} offen offset:{(s&3)*1024+hf*512} sc1", (tag, s))
    def h_gemm():
        for u in range(90):
            s, p = divmod(u, 5)
            a.wait(lg=lambda t: t == ('W', u))
            mfma(AC5+4*p, RING+4*(u % 7), XF+4*s, AC5+4*p if s else None)
            if u % 4 == 1: wd()
            if wa and u+7+12 in bounds:
                k = bounds.index(u+19)+1; assert nw[0] >= 7*k+7; a.wait(vm=lambda t: t == ('w1', k)); lds_signal(16+k)
            if u+7+6 in bounds: st_issue(bounds.index(u+13)+1)
            if u+7 in bounds: st_test(bounds.index(u+7)+1)
            if u+7 < 90: rdW(u+7)
    R2G = 64
    def rdW2(u):
        s, p = divmod(u, 5); o = R2 + s*4608 + p*1024
        if p < 4: a.ds(f"ds_read_b128 {vr(R2G+4*(u%NR),4)}, v{[vL16,vB2,vB3][o>>16]} offset:{o&65535}", ('W', u))
        else: a.ds(f"ds_read_b128 {vr(R2G+4*(u%NR),4)}, v{50+(s>=9)} offset:{(s%9)*4608}", ('W', u))
    def g2_gemm():
        for u in range(90):
            s, p = divmod(u, 5)
            if p == 0: a.wait(lg=lambda t: t == ('W', u+4), vm=lambda t: t == ('hs', s))
            mfma(AC5+4*p, R2G+4*(u % NR), XF+4*s, AC5+4*p)
            if u+NR < 90: rdW2(u+NR)
            if p in (1, 3) and lead+2*s+(p >> 1) < 18:
                tile_load(lead+2*s+(p >> 1), 'hs')
                if lead+2*s+(p >> 1) == 17: lds_signal(5)
    a(f"s_setprio {gp0}")
    st_test(0)
    for u in range(7): rdW(u)
    a(f"v_mul_f32 v{T}, v{vK0}, v{vR}\nv_fmaak_f32 v{T}, v{T}, v{vR}, {f2u(1e-5):#x}\nv_rsq_f32 v{T}, v{T}\nv_cndmask_b32 v{T}, 0, v{T}, {sr(sTab+8,2)}")
    a(f"v_rcp_f32 v{vIr}, v{T}\nv_mul_f32 v{vK0}, {f2u(C0):#x}, v{T}\nv_mul_f32 v{vK1}, v{T}, v{T}\nv_mul_f32 v{vK1}, v{vK1}, v{T}\nv_mul_f32 v{vK1}, {f2u(C1):#x}, v{vK1}")
    h_gemm()
    a(f"s_setprio {aprio}")
    lds_signal(8)
    if aw:
        lds_wait(15, 1)
        a(f"s_lshl2_add_u32 s{t3}, s{sJ}, s{sT}"); chk_issue(C_W1, t3, sE, 0)
    stamp(3)
    def pub(k, base):
        vHs, vHx = (48, 49) if base == HS else (vHs2, vHs2+1)
        if k == 0: a(f"s_mov_b32 s{t4}, {base}")
        if k < 2: a.vmem(f"buffer_store_dwordx4 {vr(PK+4*k,4)}, v{vHs}, {S(WS)}, s{t4} offen offset:{1024*k} sc1", 'st')
        else: a.vmem(f"buffer_store_dwordx2 {vr(PK+8,2)}, v{vHx}, {S(WS)}, s{t4} offen sc1", 'st')
    for k, (lo, hi) in enumerate(((0, 8), (8, 20))):
        R_ = range(lo, hi)
        for i in R_: a(f"v_mul_f32 v{GT+i}, v{AC5+i}, v{AC5+i}")
        for i in R_: a(f"v_fma_f32 v{GT+i}, v{GT+i}, v{vK1}, v{vK0}")
        for i in R_: a(f"v_mul_f32 v{GT+i}, v{GT+i}, v{AC5+i}")
        for i in R_: a(f"v_exp_f32 v{GT+i}, v{GT+i}")
        for i in R_: a(f"v_fma_f32 v{GT+i}, v{GT+i}, v{vIr}, v{vIr}")
        for i in R_: a(f"v_rcp_f32 v{GT+i}, v{GT+i}")
        for i in R_: a(f"v_mul_f32 v{GT+i}, v{GT+i}, v{AC5+i}")
        for i in range(lo, hi, 2): cvt(PK+i//2, GT+i, GT+i+1)
        pub(k, HS)
    pub(2, HS)
    lds_signal(4)
    stamp(13)
    a(f"s_mul_i32 s{sXo}, s{sTT}, 18432\ns_add_u32 s{sXo}, s{sXo}, {HS}")
    def pr(d): return (AC5+8*(d & 1)+(d >> 1), AC5+8*(d & 1)+4+(d >> 1)) if d < 8 else (AC5+2*d, AC5+2*d+1)
    def acc_init():
        for d in range(10): a(f"v_lshlrev_b32 v{pr(d)[0]}, 16, v{RES+d}\nv_and_b32 v{pr(d)[1]}, s{sMask}, v{RES+d}")
    def w2_dma(n):
        if n < 20: a(f"s_add_u32 m0, s{sMb}, {n*4096}")
        else: a(f"s_mov_b32 m0, {R2+81920}")
        a(f"s_add_u32 s{sTo}, s{sC}, m0")
        a.vmem(f"buffer_load_dwordx4 v{vL16}, {S(WS)}, s{sTo} offen sc1 lds", 'w2')
    if aw:
        a(f"s_mul_i32 s{sC}, s{sJ}, {PL.slice}\ns_add_u32 s{sC}, s{sC}, {WM+PL.w2off-R2}\ns_lshl_b32 s{sMb}, s{sT}, 10\ns_add_u32 s{sMb}, s{sMb}, {R2}")
        lds_wait(8)
        if wpre:
            chk_test(sE, 0, 36)
            for n in range(wpre): w2_dma(n)
    else: lds_wait(15, 1)
    if not (wa or xne):
        for s in range(xnw): xn_write(s)
    a.wait(vm=lambda t: t == 'st'); stamp(4)
    if aw:
        signal(sTab+12); signal(sTab+13)
        if not wpre:
            ok = a.label('w2ok'); a(f"s_cmp_ge_u32 s0, 36\ns_cbranch_scc1 {ok}"); poll(sE, 36); a(f"{ok}:")
        for n in range(wpre, 21):
            w2_dma(n)
            if n == 14: a(f"s_mov_b32 s3, 0\ns_atomic_add s3, {sr(pCNT,2)}, s{sTab+13} glc")
        stamp(5)
    else: signal(sTab+12); signal_ret(sTab+13)
    if not (wa or xne):
        for s in range(xnw, 18): xn_write(s)
        xn_done()
    poll(sTab+13, 16, after_ret=2 if aw else True)
    stamp(6)
    for s in range(lead): tile_load(s, 'hs')
    if lead == 18: lds_signal(5)
    if aw: a.wait(vm=lambda t: t == 'w2'); lds_signal(0)
    acc_init()
    lds_wait(0)
    for u in range(NR): rdW2(u)
    g2_gemm()
    lds_signal(1)
    stamp(7)
    a(f"v_cmp_gt_u32 vcc, 2, v{vG}\ns_lshl_b32 s{t2}, s{sTT}, 10\ns_add_u32 s{t2}, s{t2}, {ST}\ns_lshl_b32 s{t3}, s{sJ}, 7\ns_add_u32 s{t3}, s{t3}, s{t2}")
    for k in range(3):
        for d in range(4*k, min(4*k+4, 10)): cvt(PK+d, *pr(d))
        if k == 2: a(f"v_cndmask_b32 v{T+2}, 0, v{PK+8}, vcc\nv_cndmask_b32 v{T+3}, 0, v{PK+9}, vcc")
        pub(k, X1)
        if k < 2: mfma(SQ, PK+4*k, PK+4*k, SQ if k else None); mfma(SUM, ONES, PK+4*k, SUM if k else None)
        else: mfma(SQ, T+2, T+2, SQ, 16); mfma(SUM, ONES, T+2, SUM, 16)
    diag(SUM+1)
    a.vmem(f"buffer_store_dwordx2 {vr(SUM,2)}, v{vSs}, {S(WS)}, s{t3} offen sc1", 'st')
    lds_signal(6)
    a(f"s_lshl2_add_u32 s{t3}, s{sJ}, s{sT}"); chk_issue(C_W, t3, t4, 0)
    stA = Stream(len(PL.stream[0]), D); stream_base(0)
    nfirst = next(n for n, b in enumerate(PL.stream[0]) if b[1] != 'w3')
    if late == 1: stA.limit = nfirst; stA.hook[nfirst-1] = lambda: lds_signal(20)
    if late == 2:
        stA.limit = nfirst+dxa
        stA.hook[nfirst-5] = lambda: a.ds(f"ds_read_b32 v63, v{vLC} offset:40", 'stf')
        def w4_test():
            ok = a.label('w4ok')
            a.wait(lg=lambda t: t == 'stf')
            a(f"v_readfirstlane_b32 s3, v63\ns_cmp_ge_u32 s3, 1\ns_cbranch_scc1 {ok}")
            sv = list(a.lg); lds_wait(10, 1); a.lg = sv
            a(f"{ok}:")
        stA.hook[nfirst] = w4_test
    a(f"v_add_u32 v{vXw}, {R2-R1}, v{vXw}\ns_mul_i32 s{sXo}, s{sTT}, 18432\ns_add_u32 s{sXo}, s{sXo}, {X1}")
    IDN = 44; NM = 48; DD = 64
    a(f"v_and_b32 v{T}, 1, v{vM}\nv_lshlrev_b32 v{T}, 4, v{T}\nv_lshlrev_b32 v{T}, v{T}, s{sLo}\ns_or_b64 vcc, {sr(sTab,2)}, {sr(sTab+2,2)}\nv_cndmask_b32 v{IDN}, 0, v{T}, vcc\ns_or_b64 vcc, {sr(sTab+4,2)}, {sr(sTab+6,2)}\nv_cndmask_b32 v{IDN+1}, 0, v{T}, vcc")
    a(f"s_lshl_b32 s{t3}, s{sT}, 6\nv_lshl_add_u32 v{IDN+2}, v{vM}, 2, v{vLC}\nv_add_u32 v{IDN+2}, s{t3}, v{IDN+2}")
    a.wait(vm='all'); stamp(8)
    signal_ret(sTab+13)
    poll(sTab+13, 24, after_ret=True)
    stamp(10)
    for u in range(2): a.vmem(f"buffer_load_dwordx2 {vr(T+8+2*u,2)}, v{vSl}, {S(WS)}, s{t2} offen offset:{u*128} sc1", 'sts')
    for s in range(lead): tile_load(s, 'x1')
    chk_test(t4, 0, 32)
    lds_wait(1)
    a.wait(vm=lambda t: t == 'sts')
    a(f"v_add_f32 v{T+8}, v{T+8}, v{T+10}\nv_add_f32 v{T+9}, v{T+9}, v{T+11}\nv_permlane16_swap_b32 v{T+8}, v{T+9}\nv_add_f32 v{T+8}, v{T+8}, v{T+9}\nv_mov_b32 v{T+9}, v{T+8}")
    a(f"v_permlane32_swap_b32 v{T+8}, v{T+9}\nv_add_f32 v{T+8}, v{T+8}, v{T+9}\nv_mov_b32 v{T+9}, v{T+8}\nv_permlane16_swap_b32 v{T+8}, v{T+9}")
    for q in range(4): a(f"v_mul_f32 v{NM+q}, {f2u(-1/576):#x}, v{T+8}")
    def x1_consts():
        a(f"v_mul_f32 v{T+9}, {f2u(1/576):#x}, v{T+9}\nv_fma_f32 v{T+9}, -v{NM}, v{NM}, v{T+9}\nv_max_f32 v{T+9}, 0, v{T+9}\nv_add_f32 v{T+9}, {f2u(1e-5):#x}, v{T+9}\nv_rsq_f32 v{T+10}, v{T+9}")
        a(f"v_mul_f32 v{T+9}, v{T+9}, v{T+10}\nv_mul_f32 v{T+11}, v{T+10}, v{T+10}\nv_mul_f32 v{T+10}, {f2u(C0):#x}, v{T+10}\nv_mul_f32 v{T+11}, {f2u(0.044715):#x}, v{T+11}\nv_mul_f32 v{T+11}, v{T+11}, v{T+10}")
        for q, r in enumerate((T+10, T+11, T+9)): a.ds(f"ds_write_b32 v{IDN+2}, v{r} offset:{256+256*q}", 'w')
    nx = lead
    for s in range(19):
        if s < 18:
            a.wait(vm=lambda t: t == ('x1', s))
            for q in range(2): mfma(DD+8*(s & 1)+4*q, IDN, XF+4*s+2*q, NM, 16)
        if s == 0: x1_consts()
        for _ in range(2):
            if nx < 18:
                tile_load(nx, 'x1'); nx += 1
                if nx == 18: lds_signal(25)
            elif stA.nl < D:
                stA.load()
                if stA.nl == D: lds_signal(26)
        if s:
            for d in range(4): cvt(XF+4*(s-1)+d, DD+8*((s-1) & 1)+2*d, DD+8*((s-1) & 1)+2*d+1)
            a.ds(f"ds_write_b128 v{vXw}, {vr(XF+4*(s-1),4)} offset:{(s-1)*1024}", 'w')
    while stA.nl < D: stA.load()
    lds_signal(2)
    stamp(11)
    lds_wait(2)
    rdB(K3, 0); gc_load()
    stamp(12)
    def red(k):
        def f():
            sk = a.label('nored')
            a(f"s_cmp_ge_u32 s{sI}, 20\ns_cbranch_scc1 {sk}")
            sv = list(a.vm)
            if redm:
                a(f"s_bitcmp{1 if redm == 1 else 0}_b32 s{sJ}, {min(mode,2)}\ns_cbranch_scc1 {sk}")
                sH = 91
                if k == 0: a(f"s_and_b32 s{sH}, s{sI}, 1\ns_lshl_b32 s{sH}, s{sH}, {min(mode,2)}\ns_xor_b32 s{sH}, s{sH}, s{sJ}\ns_lshl2_add_u32 s{sH}, s{sH}, s{sT}"); chk_issue(C_FOLD, sH, t4, 0)
                if k == 1:
                    chk_test(t4, 0, 50)
                    a(f"v_mul_u32_u24 v40, 2560, v{vG}\nv_lshl_add_u32 v40, v{vM}, 4, v40")
                    a(f"s_mul_i32 s{t1}, s{sH}, {32*2560}\ns_lshr_b32 s{t2}, s{sI}, 1\ns_lshl_b32 s{t2}, s{t2}, 8\ns_add_u32 s{t1}, s{t1}, s{t2}\ns_add_u32 s{t1}, s{t1}, {KVP}")
                    for u in range(8):
                        a(f"buffer_load_dwordx4 {vr(64+4*u,4)}, v40, {S(WS)}, s{t1} offen sc1")
                        if u < 7: a(f"s_add_u32 s{t1}, s{t1}, {4*2560}")
                    a(f"v_lshlrev_b32 v41, 4, v{vM}\nv_lshl_add_u32 v41, v{vG}, 3, v41\nv_lshrrev_b32 v48, 1, v{vG}\nv_lshl_add_u32 v41, v48, 28, v41")
                    a(f"v_and_b32 v48, 1, v{vM}\nv_lshlrev_b32 v48, 4, v48\nv_lshlrev_b32 v48, v48, s{sLo}\nv_lshrrev_b32 v49, 1, v{vM}")
                    for q in range(4): a(f"v_cmp_eq_u32 vcc, {q}, v49\nv_cndmask_b32 v{44+q}, 0, v48, vcc")
                if k == 2:
                    a(f"s_mul_i32 s{t1}, s{sH}, 2560\ns_add_u32 s{t1}, s{t1}, s{t2}\ns_add_u32 s{t1}, s{t1}, {KV}\ns_waitcnt vmcnt(0)")
                    for u in range(8): mfma(48, 44, 64+4*u, 48 if u else None)
                    cvt(48, 48, 49); cvt(49, 50, 51)
                    a(f"buffer_store_dwordx2 v[48:49], v41, {S(WS)}, s{t1} offen sc1")
                if k == 3: a("s_waitcnt vmcnt(0)"); signal(t4)
                a.vm = sv; a(f"{sk}:"); return
            if k == 0: a(f"s_lshl2_add_u32 s{sTT}, s{sJ}, s{sT}"); chk_issue(C_FOLD, sTT, t4, 0)
            if k == 1:
                chk_test(t4, 0, 50)
                a(f"v_mul_u32_u24 v40, 2560, v{vG}\nv_lshl_add_u32 v40, v{vM}, 3, v40\nv_lshlrev_b32 v41, 3, v{vM}\nv_lshl_add_u32 v41, v{vG}, 28, v41")
                a(f"v_and_b32 v64, 1, v{vM}\nv_lshlrev_b32 v64, 4, v64\nv_lshlrev_b32 v64, v64, s{sLo}\nv_lshrrev_b32 v65, 1, v{vM}\nv_cmp_eq_u32 vcc, 0, v65\nv_cndmask_b32 v68, 0, v64, vcc\nv_cmp_eq_u32 vcc, 1, v65\nv_cndmask_b32 v69, 0, v64, vcc")
                a(f"s_mul_i32 s{t1}, s{sTT}, {32*2560}\ns_lshl_b32 s{t2}, s{sI}, 7\ns_add_u32 s{t1}, s{t1}, s{t2}\ns_add_u32 s{t1}, s{t1}, {KVP}")
                for u in range(8):
                    a(f"buffer_load_dwordx2 {vr(72+2*u,2)}, v40, {S(WS)}, s{t1} offen sc1")
                    if u < 7: a(f"s_add_u32 s{t1}, s{t1}, {4*2560}")
            if k == 2:
                a(f"s_mul_i32 s{t1}, s{sTT}, 2560\ns_add_u32 s{t1}, s{t1}, s{t2}\ns_add_u32 s{t1}, s{t1}, {KV}\ns_waitcnt vmcnt(0)")
                for u in range(8): mfma(64, 68, 72+2*u, 64 if u else None, 16)
                cvt(64, 64, 65); cvt(65, 66, 67)
                a(f"buffer_store_dwordx2 v[64:65], v41, {S(WS)}, s{t1} offen sc1")
            if k == 3: cnt_off(t4, C_FOLD, sTT); a("s_waitcnt vmcnt(0)"); signal(t4)
            a.vm = sv
            a(f"{sk}:")
        return f
    def w4_chk(): a(f"s_lshl2_add_u32 s{sTT}, s{sJ}, s{sT}"); chk_issue(C_W4, sTT, sC, sE)
    def w4_go():
        chk_test(sC, sE, 32); lds_signal(10)
        stA.limit = stA.n
    def w4_ld(n): return lambda: [stA.load() for _ in range(n)]
    def seq(*fs): return lambda: [f() for f in fs]
    hk = {rpos[k]: red(k) for k in range(4)}
    def addh(k, f): hk[k] = seq(hk[k], f) if k in hk else f
    if late == 1:
        addh(wpos[0], w4_chk); addh(wpos[1], w4_go)
        for q in range(wpos[3]): addh(wpos[2]+q, w4_ld(D//wpos[3]))
    mlp(0, stA, hk, None)
    a("s_branch L_fin")

    a("L_grp_b:"); a.vm = []; a.lg = []; cur[0] = 'b'
    vD1, vD2, vE1, vE2, vE3, vSw = 40, 41, 42, 43, 44, 45
    FW = 64; FP = 88; SM = 96; BM = 112; FD = 128; FO = 160; SWU = 96
    SWL = 176; SWO = 224; SWN = 4
    a(f"s_lshl2_add_u32 s{sTT}, s{sJ}, s{sT}")
    a(f"s_lshl2_add_u32 s{t0}, s{sI}, s{sT}\ns_lshl_b32 s{sTo}, s{t0}, 7")
    a(f"s_getpc_b64 s[96:97]\nL_pc:\ns_add_u32 s96, s96, L_table-L_pc\ns_addc_u32 s97, s97, 0")
    if cpf == 1:
        a(f"s_lshr_b32 s{t2}, s2, 3\ns_cmp_ge_u32 s{t2}, (L_table-{name}+8191)/8192\ns_cbranch_scc1 L_nopf\ns_cmp_lg_u32 s{sT}, 0\ns_cbranch_scc1 L_nopf")
        a(f"s_lshl_b32 s{t2}, s{t2}, 13\nv_lshlrev_b32 v{T}, 7, v{vL}\nv_add_u32 v{T}, s{t2}, v{T}\ns_sub_u32 s{t2+1}, s96, L_table-{name}\ns_subb_u32 s{t2+2}, s97, 0")
        a(f"global_load_dword v62, v{T}, {sr(t2+1,2)}\nL_nopf:")
    if cpf == 2:
        a(f"s_cmp_lg_u32 s{sT}, 0\ns_cbranch_scc1 L_nopf\ns_lshr_b32 s{t2}, s2, 3\nv_lshlrev_b32 v{T}, 5, v{vM}\nv_add_u32 v{T}, s{t2}, v{T}\nv_lshlrev_b32 v{T}, 7, v{T}")
        a(f"s_sub_u32 s{t2+1}, s96, L_table-{name}\ns_subb_u32 s{t2+2}, s97, 0\ns_mov_b64 exec, 0xffff\nglobal_load_dword v62, v{T}, {sr(t2+1,2)}\ns_mov_b64 exec, -1\nL_nopf:")
    sHd, sS, sU = 24, 25, 0
    def tab_load(): a(f"s_add_u32 s96, s96, s{sTo}\ns_addc_u32 s97, s97, 0\ns_load_dwordx16 {sr(sTab,16)}, s[96:97], 0\ns_load_dwordx16 {sr(sTab+16,16)}, s[96:97], 64")
    def common0():
        a("s_waitcnt lgkmcnt(0)")
        stamp(0)
        srd(WS, pWS, 0x10000000); cnt_base()
    def dbg_issue():
        srd(SA_, pDBG, 256); a.vmem(f"buffer_load_dword v61, off, {S(SA_)}, 0 sc1", 'dbg')
    def dbg_test():
        ok = a.label('rdy')
        a.wait(vm=lambda t: t == 'dbg')
        a(f"v_readfirstlane_b32 s3, v61\ns_cmp_ge_u32 s3, 1\ns_cbranch_scc1 {ok}")
        srd(SA_, pDBG, 256)
        sv = list(a.vm); poll(None, 1, dbg=True, sleep=2); a.vm = sv
        a(f"{ok}:")
    def opt_slot(slot, fn):
        sk = a.label('opt'); a(f"s_cmp_ge_u32 s{sTab+6}, {JUNK}\ns_cbranch_scc1 {sk}"); fn(); a(f"{sk}:")
    def swz_load(slot, R):
        if slot in nosw: return
        if slot in (0, 4): opt_slot(slot, lambda: swz_load_(slot, R))
        else: swz_load_(slot, R)
    def swz_store(slot, R):
        if slot in nosw: return
        if slot in (0, 4):
            sv = list(a.vm); opt_slot(slot, lambda: swz_store_(slot, R)); a.vm = sv + [('opt', 'sws', slot)]
        else: swz_store_(slot, R)
    def swz_load_(slot, R):
        b = sTab+8*(slot % 4)
        a(f"s_lshr_b32 s{t0}, s{b+7}, 28\ns_cmp_eq_u32 s{t0}, 1\ns_cselect_b32 s{SA_}, s{pW4}, s{pW3}\ns_cselect_b32 s{SA_+1}, s{pW4+1}, s{pW3+1}")
        a(f"s_mov_b32 s{SA_+2}, 5308416\ns_cmp_eq_u32 s{t0}, 2\ns_cselect_b32 s{SA_}, s{pWO}, s{SA_}\ns_cselect_b32 s{SA_+1}, s{pWO+1}, s{SA_+1}\ns_cselect_b32 s{SA_+2}, 663552, s{SA_+2}")
        if slot == 1: a(f"s_cmp_ge_u32 s{t0}, 3\ns_cselect_b32 s{SA_}, s{pW2}, s{SA_}\ns_cselect_b32 s{SA_+1}, s{pW2+1}, s{SA_+1}\ns_cselect_b32 s{SA_+2}, 663552, s{SA_+2}")
        a(f"s_and_b32 s{SA_+1}, s{SA_+1}, 0xffff\ns_mov_b32 s{SA_+3}, 0x20000")
        a(f"v_and_b32 v{T}, 1, v{vG}\nv_mul_lo_u32 v{T}, v{T}, s{b+2}\nv_lshrrev_b32 v{T+1}, 1, v{vG}\nv_mul_lo_u32 v{T+1}, v{T+1}, s{b+3}\nv_lshlrev_b32 v{T+2}, 3, v{vM}\nv_add3_u32 v{vSw}, v{T}, v{T+1}, v{T+2}")
        a(f"s_mul_i32 s{t0}, s{sJ}, s{b+1}\ns_add_u32 s{t0}, s{t0}, s{b}\ns_add_u32 s{t1}, s{t0}, s{b+5}")
        if slot == 1:
            lx, ly = a.label('noxl'), a.label('xl')
            a(f"s_cmp_lt_u32 s{b+7}, 0x40000000\ns_cbranch_scc1 {lx}\nv_and_b32 v{T+2}, 7, v{vL}\nv_lshlrev_b32 v{T+2}, 1, v{T+2}\nv_add3_u32 v{T+2}, v{T}, v{T+1}, v{T+2}")
            for jj in range(8):
                so = t0 if jj < 4 else t1
                a(f"buffer_load_ushort v{R+jj}, v{T+2}, {S(SA_)}, s{so} offen offset:128")
                if jj & 3 != 3: a(f"s_add_u32 s{so}, s{so}, s{b+4}")
            a(f"s_branch {ly}\n{lx}:")
        for jj in range(8):
            so = t0 if jj < 4 else t1
            a.vmem(f"buffer_load_dwordx2 {vr(R+2*jj,2)}, v{vSw}, {S(SA_)}, s{so} offen", ('sw' if slot % 4 else 'opt', slot))
            if jj & 3 != 3: a(f"s_add_u32 s{so}, s{so}, s{b+4}")
        if slot == 1: a(f"{ly}:")
    def swz_store_(slot, R):
        b = sTab+8*(slot % 4)
        a(f"s_mul_i32 s{t0}, s{sJ}, {PL.slice}\ns_add_u32 s{t0}, s{t0}, s{b+6}\ns_and_b32 s{t1}, s{b+7}, 0xfffffff\ns_mov_b32 s{t2}, 0x05040100\ns_mov_b32 s{t3}, 0x07060302")
        a.wait(vm=lambda t: t == ('sw' if slot % 4 else 'opt', slot))
        if slot == 1:
            lx, ly = a.label('noxs'), a.label('xs'); a(f"s_cmp_lt_u32 s{b+7}, 0x40000000\ns_cbranch_scc1 {lx}")
            for p in range(4): a(f"v_lshl_or_b32 v{SWO+p}, v{R+1+2*p}, 16, v{R+2*p}")
            a(f"v_lshl_add_u32 v{T}, v{vG}, 3, v{vM}\nv_lshlrev_b32 v{T}, 4, v{T}\nv_add_u32 v{T}, 4096, v{T}\nv_mov_b32 v{T+1}, {BIG:#x}\nv_cmp_gt_u32 vcc, 8, v{vM}\nv_cndmask_b32 v{T}, v{T+1}, v{T}, vcc")
            a(f"buffer_store_dwordx4 {vr(SWO,4)}, v{T}, {S(WS)}, s{t0} offen sc1\ns_branch {ly}\n{lx}:")
        for t in range(4):
            for p in range(4): a(f"v_perm_b32 v{SWO+4*(t%SWN)+p}, v{R+4*p+2+(t>>1)}, v{R+4*p+(t>>1)}, s{t3 if t&1 else t2}")
            a.vmem(f"buffer_store_dwordx4 {vr(SWO+4*(t%SWN),4)}, v{vL16}, {S(WS)}, s{t0} offen sc1", ('opt', 'u') if slot == 1 and t < 3 else 'sws')
            if t < 3: a(f"s_add_u32 s{t0}, s{t0}, s{t1}")
        if slot == 1: a(f"{ly}:")
    def sel(dst, tgt):
        a(f"v_lshlrev_b32 v{T}, 3, v{vG}\nv_sub_u32 v{T}, v{tgt}, v{T}\nv_and_b32 v{T+1}, 1, v{T}\nv_lshlrev_b32 v{T+1}, 4, v{T+1}\nv_lshlrev_b32 v{T+1}, v{T+1}, v{T+6}\nv_ashrrev_i32 v{T}, 1, v{T}")
        for p in range(4): a(f"v_cmp_eq_u32 vcc, {p}, v{T}\nv_cndmask_b32 v{dst+p}, 0, v{T+1}, vcc")
    def early(fold):
        vFa = 40
        if fold:
            if bperm: a(f"v_lshrrev_b32 v{T+6}, 2, v{vL}\nv_and_b32 v{T+7}, 3, v{vL}\nv_lshlrev_b32 v{vFa+3}, 4, v{vM}\nv_lshl_add_u32 v{vFa+3}, v{vG}, 2, v{vFa+3}")
            else: a(f"v_mov_b32 v{T+6}, v{vM}\nv_mov_b32 v{T+7}, v{vG}")
            a(f"v_lshrrev_b32 v{T}, 2, v{T+6}\nv_and_b32 v{T+1}, 3, v{T+6}\nv_lshl_add_u32 v{T}, v{T}, 3, v{T+1}\nv_lshlrev_b32 v{T+1}, 4, v{T+7}\nv_mov_b32 v{T+5}, {BIG:#x}")
            a(f"v_cmp_eq_u32 vcc, 3, v{T+7}\nv_cndmask_b32 v{T+1}, v{T+1}, v{T+5}, vcc")
            a(f"v_mul_u32_u24 v{T+2}, 3456, v{T}\nv_add_u32 v{vFa}, v{T+2}, v{T+1}")
            for hf in range(2):
                a(f"v_add_u32 v{T+3}, {4*hf}, v{T}\nv_cmp_gt_u32 vcc, 18, v{T+3}\nv_mul_u32_u24 v{T+3}, 36, v{T+3}\nv_add_u32 v{T+3}, v{T+3}, v{T+1}\nv_cndmask_b32 v{vFa+1+hf}, v{T+5}, v{T+3}, vcc")
        def prep_ld():
            if fold:
                srd(SA_, pPHI, 20736)
                a(f"s_mul_i32 s{t0}, s{sI}, {32*3456}\ns_mul_i32 s{t1}, s{sTT}, 36\ns_add_u32 s{t0}, s{t0}, s{t1}\ns_add_u32 s{t1}, s{t0}, {4*3456}\ns_mul_i32 s{t2}, s{sTT}, 648")
                for hf in range(2): a.vmem(f"buffer_load_dwordx4 {vr(FP+4*hf,4)}, v{vFa+1+hf}, {S(SA_)}, s{t2} offen", 'fp')
                srd(SA_, pQKV, 1990656)
                for mi, off in enumerate((1152, 0, 2304)):
                    for hf in range(2): a.vmem(f"buffer_load_dwordx4 {vr(FW+8*mi+4*hf,4)}, v{vFa}, {S(SA_)}, s{t1 if hf else t0} offen offset:{off}", 'fw')
            else:
                a("s_waitcnt lgkmcnt(0)"); swz_load(1, SWU)
        def prep_sel():
            if not fold: return
            a(f"v_mov_b32 v{T+6}, 0x3f80")
            sel(SM, vM)
            a(f"v_bfe_u32 v{T+3}, v{vM}, 2, 1\nv_add_u32 v{T+3}, 16, v{T+3}\nv_and_b32 v{T+4}, 3, v{vM}")
            for u in range(3):
                a(f"v_cmp_eq_u32 vcc, {u}, v{T+4}\nv_cndmask_b32 v{T+5}, 63, v{T+3}, vcc"); sel(SM+4+4*u, T+5)
        def prep_calc():
            if not fold: return
            a.wait(vm=lambda t: t == 'fw')
            if bperm:
                for r in list(range(FP, FP+8)) + list(range(FW, FW+24)): a.ds(f"ds_bpermute_b32 v{r}, v{vFa+3}, v{r}", ('bp', r >= FP))
                a.wait(lg=lambda t: t == ('bp', True))
            for u in range(3):
                for hf in range(2): mfma(FD+8*u+4*hf, FP+4*hf, SM+4*u, None)
            for u in range(3):
                for q in range(4): cvt(BM+4*u+q, FD+8*u+2*q, FD+8*u+2*q+1)
            a.wait(lg='all')
            for hf in range(2):
                mfma(FD+4*hf, FW+4*hf, BM, None); mfma(FD+8+4*hf, FW+8+4*hf, BM, None); mfma(FD+16+4*hf, FW+16+4*hf, SM, None)
                mfma(FD+24+4*hf, FW+4*hf, BM+4, None); mfma(FD+24+4*hf, FW+8+4*hf, BM+8, FD+24+4*hf); mfma(FD+24+4*hf, FW+16+4*hf, SM+12, FD+24+4*hf)
            for tl in range(4):
                for q in range(4): cvt(FO+4*tl+q, FD+8*tl+2*q, FD+8*tl+2*q+1)
        def prep_st():
            if fold:
                a(f"s_lshr_b32 s{t1}, s{sI}, 1\ns_mul_i32 s{t0}, s{sTT}, 9\ns_add_u32 s{t0}, s{t0}, s{t1}\ns_mul_i32 s{t0}, s{t0}, 7168\ns_add_u32 s{t0}, s{t0}, {WQ}\ns_and_b32 s{t2}, s{sI}, 1\ns_lshl_b32 s{t1}, s{t2}, 12\ns_add_u32 s{t1}, s{t1}, s{t0}")
                a(f"v_lshrrev_b32 v{T}, 3, v{vM}\nv_cmp_eq_u32 vcc, s{t2}, v{T}\nv_mov_b32 v{T+1}, {BIG:#x}\nv_cndmask_b32 v{T}, v{T+1}, v{vL16}, vcc")
                for tl in range(3): a.vmem(f"buffer_store_dwordx4 {vr(FO+4*tl,4)}, v{vL16}, {S(WS)}, s{t1} offen offset:{tl*1024} sc1", ('opt', 'u'))
                a.vmem(f"buffer_store_dwordx4 {vr(FO+12,4)}, v{T}, {S(WS)}, s{t0} offen offset:3072 sc1", 'sws')
            else:
                swz_store(1, SWU)
        selq = [fold]
        for op in pa:
            if op not in ('r', 'R', 's') and selq[0]: prep_sel(); selq[0] = False
            if 1 in nosw and op in 'uUR': continue
            if op == 'u': prep_calc()
            elif op == 'R': prep_ld()
            elif op == 'U': prep_st(); a.vm[-1] = 'urg'
            else: step(op)
    def step(op):
        if op[0] == 'L':
            k = int(op[1]); a("s_waitcnt lgkmcnt(0)"); a.lg = []
            if len(op) > 2: a.wait(vm=lambda t: t == ('sw', k-1))
            swz_load(k, SWL+16*(k-2))
        elif op[0] == 'S': swz_store(int(op[1]), SWL+16*(int(op[1])-2))
        elif op[0] == 'g': lds_wait(int(op[1:]), sleep=1)
        elif op[0] == 'D':
            for q in range(7): w_dma1(7*int(op[1])+q)
        elif op[0] == 'f': a.wait(vm=lambda t: t == ('w1', int(op[1]))); lds_signal(16+int(op[1])); stamp(40+int(op[1]))
        elif op == 'e': dbg_test(); lds_signal(15)
        elif op == 'T':
            sk = a.label('tch'); a(f"s_cmp_lg_u32 s{sT}, 1\ns_cbranch_scc1 {sk}\nv_lshlrev_b32 v{T}, 19, v{vL}\ns_lshl_b32 s{t0}, s2, 7")
            for p_, sz in ((pW4, 5308416-32768), (pWO, 663552-32768), (pOUT, 2359296-32768)):
                srd(SA_, p_, sz); a(f"buffer_load_dword v62, v{T}, {S(SA_)}, s{t0} offen")
            a(f"{sk}:")
        elif op == 'O': cnt_off(t0, C_FOLD, sTT); poll(t0, 18, sleep=2); stamp(5)
        elif op == 'B':
            rot_calc(t2)
            a(f"s_mul_i32 s16, s{sTT}, 64512\ns_add_u32 s16, s16, {WQ}\ns_add_u32 s17, s16, 64512\ns_mul_i32 s{t2}, s{t2}, 7168\ns_add_u32 s{sOff}, s16, s{t2}")
            stQ.blk = 7; stQ.wrap = 16
            for _ in range(DB): stQ.load()
            stamp(6)
        elif op == 'd': dbg_issue()
        elif op == 'P':
            sk = a.label('nosig'); sv = list(a.vm)
            cnt_off(t0, C_FOLD, sTT); cnt_off(t1, C_W1, sJ, 4)
            a(f"s_waitcnt lgkmcnt(0)\ns_cmp_ge_u32 s{sI}, 18\ns_cselect_b32 s{t0}, s{t1}, s{t0}\ns_cselect_b32 s{t1}, s{sTab+15}, 0x30000000\ns_cmp_lt_u32 s{t1}, 0x30000000\ns_cbranch_scc1 {sk}")
            a.wait(vm=lambda t: t == 'urg'); signal(t0)
            if aw:
                a(f"s_cmp_lt_u32 s{sI}, 18\ns_cbranch_scc1 {sk}")
                for r in range(3): a(f"s_add_u32 s{t0}, s{t0}, {CSP}"); signal(t0)
            a(f"{sk}:"); a.vm = sv; stamp(1)
        elif op[0] == 't': stamp(int(op[1:]))
        elif op[0] == 'p': a(f"s_setprio {op[1]}")
        elif op == 'M':
            srd(SX, pX, 2359296); mlp_setup()
            a(f"s_mul_i32 s{sC}, s{sJ}, {PL.slice}\ns_add_u32 s{sC}, s{sC}, {WM+PL.w2off}\ns_lshl_b32 s{t0}, s{sT}, 10\ns_add_u32 s{sE}, s{sC}, s{t0}\ns_add_u32 s{sMb}, s{t0}, {R2}")
        elif op == 'F':
            lf = a.label('f1'); a(f"s_cmp_lg_u32 s{sT}, 0\ns_cbranch_scc1 {lf}")
            cnt_off(t0, C_W1, sJ, 4); poll(t0, 36); lds_signal(3)
            a(f"{lf}:"); lds_wait(3, 1, sleep=1)
            stamp(3)
        elif op == 'W':
            for n in range(20):
                a(f"s_add_u32 m0, s{sMb}, {n*4096}")
                a.vmem(f"buffer_load_dwordx4 v{vL16}, {S(WS)}, s{sE} offen sc1 lds", 'w2')
                a(f"s_add_u32 s{sE}, s{sE}, 4096")
            a(f"s_mov_b32 m0, {R2+81920}\ns_add_u32 s{sC}, s{sC}, 81920")
            a.vmem(f"buffer_load_dwordx4 v{vL16}, {S(WS)}, s{sC} offen sc1 lds", 'w2')
        elif op == 'w': a.wait(vm=lambda t: t == 'w2'); lds_signal(0); stamp(4)
        elif op == 'A':
            cnt_off(t0, C_W, sJ, 4); a.wait(vm=lambda t: t in ('sws', 'urg', ('opt', 'sws', 0))); arrive(9, t0, 4); stamp(2)
    ops = prog.split(); cutp = ops.index('U')+1; pa, pb = ops[:cutp], ops[cutp:]
    assert ops.index('U') < ops.index('P') < ops.index('O') < ops.index('B') and ops.index('d') < ops.index('e') < ops.index('P')
    stQ = Stream(63, DB)
    if tabe == 1: tab_load(); a("s_barrier"); common0()
    elif tabe == 0: a("s_barrier"); common0(); tab_load()
    else: common0(); tab_load()
    a(f"s_xor_b32 s{t4}, s{sT}, 3\ns_or_b32 s{t4}, s{t4}, s2\ns_cbranch_scc1 L_nolead1\ns_setprio 3")
    a(f"v_mul_u32_u24 v{T+4}, {CSP}, v{vL}\nv_mov_b32 v{T+8}, 0\nv_mov_b32 v{T+9}, 0\nv_mov_b32 v{T+10}, 0\nv_mov_b32 v{T+11}, 0")
    for n in range(NCNT//64): a(f"s_mov_b32 s{t3}, {CNT+n*64*CSP}\nbuffer_store_dwordx4 {vr(T+8,4)}, v{T+4}, {S(WS)}, s{t3} offen sc1")
    a("L_nolead1:")
    if not wa: vW = 52; w_off()
    a(f"s_cmp_lg_u32 s{t4}, 0\ns_cbranch_scc1 L_nolead2")
    srd(SA_, pDBG, 256)
    a(f"s_waitcnt vmcnt(0)\ns_mov_b64 exec, 1\nbuffer_store_dword v{vOne}, off, {S(SA_)}, 0 sc1\ns_mov_b64 exec, -1\nL_nolead2:")
    a(f"s_setprio {pprio}")
    a(f"s_cmp_ge_u32 s{sI}, 18\ns_cbranch_scc1 L_nofold")
    early(True); vmF = list(a.vm); a("s_branch L_earlydone\nL_nofold:"); a.vm = []; a.lg = []
    early(False); a("L_earlydone:")
    if len(vmF) > len(a.vm): a.vm = vmF
    stamp(14)
    for op in pb: step(op)
    lds_wait(7)
    SWO = 36; SWN = 2
    def midop(ops_):
        def f():
            for op in ops_.split():
                if op[0] == 'g': a('s_setprio 3'); lds_wait(int(op[1:]), sleep=1); a(f's_setprio {gprio}')
                if op == 'L': swz_load(3, 20); swz_load(4, 48)
                if op == 'S': swz_store(3, 20); swz_store(4, 48)
        return f
    for gp, ops_ in midp.items():
        if gp < 63: stQ.hook[gp] = midop(ops_)
    KN = [('N', s) for s in range(18)]
    rdB(KN, 0)
    def q_items(si):
        kqv = [(p, 0, 32, p == 2, si == 0, True) for p in range(3)]
        return kqv + [(3, 0, 32, False, si == 0, False)] if si % 2 == 0 else [(4, 0, 32, False, si == 1, True)] + kqv
    def q_after():
        if stQ.nu+DB >= 63 and stQ.nu+DB in midp: midop(midp[stQ.nu+DB])()
    mpass(stQ, KN, 4, prio=gprio, items=q_items, after=q_after)
    stamp(7)
    a(f"s_setprio {bprio}")
    a(f"v_cmp_gt_u32 vcc, 2, v{vG}")
    xr = [ACC+48+4*tt+i for tt in range(4) for i in range(3)]
    for r in xr: a(f"v_cndmask_b32 v{r}, v{r+16}, v{r}, vcc")
    for r in xr: a(f"v_mov_b32 v{r+16}, v{r}")
    for r in xr: a(f"v_permlane32_swap_b32 v{r}, v{r+16}")
    for r in xr: a(f"v_add_f32 v{r}, v{r}, v{r+16}")
    KT, QT, VT, XT = ACC, ACC+16, ACC+32, ACC+48
    E = 64; ST1 = 104; ST2 = 108; vMask = 46; vLg = 47
    a(f"v_cmp_gt_u32 vcc, 2, v{vG}\nv_cndmask_b32 v{vMask}, 0, 1.0, vcc\nv_mov_b32 v{vLg}, {f2u(LOG2E):#x}")
    def softmax(Tl, xi, mid=None):
        lg = lambda tt: [Tl+4*tt+i for i in range(4)] + [XT+4*tt+xi]
        for tt in range(4):
            p = lg(tt)
            a(f"v_max3_f32 v{ST1+tt}, v{p[0]}, v{p[1]}, v{p[2]}\nv_min3_f32 v{ST2+tt}, v{p[0]}, v{p[1]}, v{p[2]}")
            a(f"v_max3_f32 v{ST1+tt}, v{ST1+tt}, v{p[3]}, v{p[4]}\nv_min3_f32 v{ST2+tt}, v{ST2+tt}, v{p[3]}, v{p[4]}")
        allred4([[ST1+k for k in range(4)], [ST2+k for k in range(4)]], ["v_max_f32", "v_min_f32"], lambda k, r: a(f"v_mul_f32 v{r}, v{vLg}, v{r}"))
        for tt in range(4):
            p = lg(tt); e = E+10*tt
            for i in range(5): a(f"v_fma_f32 v{e+i}, v{p[i]}, v{vLg}, -v{ST1+tt}\nv_fma_f32 v{e+5+i}, -v{p[i]}, v{vLg}, v{ST2+tt}")
            for i in range(10): a(f"v_exp_f32 v{e+i}, v{e+i}")
            for h, s_ in ((0, ST1), (5, ST2)):
                a(f"v_add_f32 v{s_+tt}, v{e+h}, v{e+h+1}\nv_add_f32 v{T}, v{e+h+2}, v{e+h+3}\nv_fmac_f32 v{s_+tt}, v{vMask}, v{e+h+4}\nv_add_f32 v{s_+tt}, v{s_+tt}, v{T}")
        if mid: mid()
        allred4([[ST1+k for k in range(4)], [ST2+k for k in range(4)]], ["v_add_f32", "v_add_f32"], lambda k, r: a(f"v_rcp_f32 v{r}, v{r}"))
        for tt in range(4):
            e = E+10*tt
            for i in range(5): a(f"v_mul_f32 v{e+i}, v{ST1+tt}, v{e+i}\nv_mul_f32 v{e+5+i}, v{ST2+tt}, v{e+5+i}")
    def w4_arrive(): cnt_off(t4, C_W4, sJ, 4); a.wait(vm='all'); arrive(11, t4, 4 if late == 1 else 1)
    midk = w4_arrive
    softmax(KT, 0, midk)
    vSw0, vSw1, vSr0, vSr1 = 40, 41, 42, 43
    KA = 112; FR = 136; VP = 148
    a(f"s_mul_i32 s{t0}, s{sT}, 1280\ns_add_u32 s{t0}, s{t0}, {SCR}")
    a(f"v_mul_u32_u24 v{T}, 80, v{vM}\nv_add_u32 v{T}, s{t0}, v{T}\nv_lshl_add_u32 v{vSw0}, v{vG}, 3, v{T}\nv_and_b32 v{T+1}, 1, v{vG}\nv_lshl_add_u32 v{vSw1}, v{T+1}, 3, v{T}")
    a(f"v_lshrrev_b32 v{T}, 2, v{vL}\nv_mul_u32_u24 v{T}, 80, v{T}\nv_add_u32 v{T}, s{t0}, v{T}\nv_and_b32 v{T+1}, 3, v{vL}\nv_lshl_add_u32 v{vSr0}, v{T+1}, 3, v{T}\nv_and_b32 v{T+1}, 1, v{vL}\nv_lshl_add_u32 v{vSr1}, v{T+1}, 3, v{T}")
    def kv_mm(tt):
        f = FR+6*(tt & 1); v0 = VP+2*(tt & 1)
        a.wait(lg=lambda t: t == ('f', tt))
        for q in range(3):
            mfma(KA+4*q, f+2*q, v0, KA+4*q if tt else None, 16); mfma(KA+12+4*q, f+2*q, f+4, KA+12+4*q if tt else None, 16)
    for tt in range(4):
        e = E+10*tt; P = T+8*(tt & 1); f = FR+6*(tt & 1)
        cvt(P, e, e+1); cvt(P+1, e+2, e+3); cvt(P+2, e+5, e+6); cvt(P+3, e+7, e+8); cvt(P+4, e+4, e+9)
        a(f"v_cvt_pk_bf16_f32 v{P+5}, v{XT+4*tt+2}, 1.0")
        a.ds(f"ds_write_b64 v{vSw0}, {vr(P,2)}", 'w'); a.ds(f"ds_write_b64 v{vSw0}, {vr(P+2,2)} offset:32", 'w'); a.ds(f"ds_write_b64 v{vSw1}, {vr(P+4,2)} offset:64", 'w')
        a.ds(f"ds_read_b64_tr_b16 {vr(f,2)}, v{vSr0}", ('f', tt)); a.ds(f"ds_read_b64_tr_b16 {vr(f+2,2)}, v{vSr0} offset:32", ('f', tt)); a.ds(f"ds_read_b64_tr_b16 {vr(f+4,2)}, v{vSr1} offset:64", ('f', tt))
        cvt(VP+2*(tt & 1), VT+4*tt, VT+4*tt+1); cvt(VP+2*(tt & 1)+1, VT+4*tt+2, VT+4*tt+3)
        if tt: kv_mm(tt-1)
    kv_mm(3)
    a(f"s_lshl_b32 s{t0}, s{sTT}, 5\ns_add_u32 s{t0}, s{t0}, s{sI}\ns_mul_i32 s{t0}, s{t0}, 2560\ns_add_u32 s{t0}, s{t0}, {KVP}\nv_lshlrev_b32 v44, 3, v{vL}")
    KP = 136
    for q in range(4): cvt(KP+q, KA+2*q, KA+2*q+1)
    for q in range(4): cvt(KP+4+q, KA+12+2*q, KA+13+2*q)
    cvt(KP+8, KA+8, KA+9); cvt(KP+9, KA+20, KA+21)
    for q in range(2): a.vmem(f"buffer_store_dwordx4 {vr(KP+4*q,4)}, v{vL16}, {S(WS)}, s{t0} offen offset:{q*1024} sc1", 'kvs')
    a.vmem(f"buffer_store_dwordx2 {vr(KP+8,2)}, v44, {S(WS)}, s{t0} offen offset:2048 sc1", 'kvs')
    stamp(8)
    def mid():
        cnt_off(t4, C_FOLD, sTT); a.wait(vm='all'); signal(t4)
    softmax(QT, 1, mid)
    PQ = 240; PX = 48
    for tt in range(4):
        e = E+10*tt; P = PQ+4*tt
        a(f"v_mul_f32 v{e+4}, v{vMask}, v{e+4}\nv_mul_f32 v{e+9}, v{vMask}, v{e+9}")
        cvt(P, e, e+1); cvt(P+1, e+2, e+3); cvt(P+2, e+5, e+6); cvt(P+3, e+7, e+8); cvt(PX+2*tt, e+4, e+9); a(f"v_mov_b32 v{PX+2*tt+1}, 0")
    stamp(9)
    if late == 2:
        a(f"s_cmp_lg_u32 s{sT}, 0\ns_cbranch_scc1 L_now4")
        cnt_off(t0, C_W4, sJ, 4); poll(t0, 32, sleep=4); lds_signal(10)
        a("L_now4:")
    lds_wait(20 if late == 1 else 2, sleep=1)
    stB = Stream(len(PL.stream[1]), D); stream_base(1)
    for _ in range(d0b): stB.load()
    a("s_setprio 0")
    nb = 18*len(PL.passes[1][2])
    if late == 1: PL.table(); stB.hook[nb-PL.late_w3] = lambda: lds_wait(10, 1)
    gc_load(); a.wait(lg='all'); rdB(K3, 0)
    stamp(12)
    KB = 64; AF = 84; OD = 32
    def kv_load():
        chk_test(t4, 0, 60 if redm else 70)
        a(f"s_mul_i32 s{t0}, s{sTT}, 2560\ns_add_u32 s{t0}, s{t0}, {KV}")
        for q in range(2): a.vmem(f"buffer_load_dwordx4 {vr(AF+6*q,4)}, v{vL16}, {S(WS)}, s{t0} offen offset:{q*1024} sc1", 'kv')
        a.vmem(f"buffer_load_dwordx2 {vr(AF+4,2)}, v44, {S(WS)}, s{t0} offen offset:2048 sc1", 'kv')
    def o_part():
        a.wait(vm=lambda t: t == 'kv')
        a(f"v_mov_b32 v{AF+10}, v{AF+5}\nv_mov_b32 v{AF+11}, 0\nv_mov_b32 v{AF+5}, 0")
        a(f"v_add_u32 v40, {EX-R1-32768}, v{vHw2}\ns_lshl_b32 s{t0}, s{sT}, 1\nv_add_u32 v41, s{t0}, v{vO8}")
        od = [32, 56, 64, 72]
        for tt in range(4):
            for dt in range(2): mfma(od[tt]+4*dt, AF+6*dt, PQ+4*tt, None)
            for dt in range(2): mfma(od[tt]+4*dt, AF+6*dt+4, PX+2*tt, od[tt]+4*dt, 16)
        for tt in range(4):
            o = od[tt]
            a(f"v_add_f32 v{o+7}, {f2u(1e-6):#x}, v{o+7}\nv_rcp_f32 v{o+7}, v{o+7}\nv_mul_f32 v{o+6}, v{vMask}, v{o+6}")
            for i in (0, 1, 2, 3, 6): a(f"v_mul_f32 v{o+i}, v{o+7}, v{o+i}")
            cvt(o, o, o+1); cvt(o+1, o+2, o+3); cvt(o+2, o+6, o+6)
            a.ds(f"ds_write_b64 v40, {vr(o,2)} offset:{tt*1024}", 'w'); a.ds(f"ds_write_b16 v41, v{o+2} offset:{tt*512}", 'w')
    mlp(1, stB, {0: lambda: chk_issue(C_FOLD, sTT, t4, 0), kvp: kv_load}, {len(PL.hw[-1])-2: o_part})
    a("L_fin:")
    if export:
        if only: a(f"s_and_b32 s{t0}, s2, {only[0]}\ns_cmp_lg_u32 s{t0}, {only[1]}\ns_cbranch_scc1 {end}")
        a("s_waitcnt lgkmcnt(0)\ns_sub_u32 s100, s100, s98\ns_and_b32 s100, s100, 0x1fff\ns_mul_i32 s100, s100, 10\ns_add_u32 s100, s100, 10000\nL_spin:\ns_memrealtime s[60:61]\ns_waitcnt lgkmcnt(0)\ns_sub_u32 s60, s60, s98\ns_cmp_lt_u32 s60, s100\ns_cbranch_scc1 L_spin")
    if stamps:
        a(f"s_lshl_b32 s{t0}, s2, 3\ns_add_u32 s{t0}, s{t0}, s{sW}\ns_lshl_b32 s{t0}, s{t0}, 8\ns_add_u32 s{t0}, s{t0}, {TS}\nv_lshlrev_b32 v{T}, 2, v{vL}")
        a(f"buffer_store_dword v{vStamp}, v{T}, {S(WS)}, s{t0} offen")
    a(f"{end}:\ns_endpgm")
    lines, nadd = fix_hazards(a.L)
    tab, dummy = PL.table(); tl = [".p2align 8", ".type L_table,@object", "L_table:"]
    for i in range(32):
        for t in range(4):
            for sl in range(4):
                m, b, js, al, be, ga, de, d0, ts = tab[i][t][sl] or dummy
                dest = WM+d0 if tab[i][t][sl] else JUNK + (i*4+t)*1024
                tl.append(f".long {b},{js},{al},{be},{ga},{de},{dest},{ts|(m<<28)}")
    return "\n".join(lines) + "\n" + "\n".join(tl) + "\n"

HDR = open('parallel_sum__linear_kernel_hedgehog__mixer_s_mlp__prompt.s.ref').read().split('; Override launch')[0]
DOC = """;
; One persistent launch, 256 workgroups (i = 64-token tile, j = column / head / hidden slice), 8 waves each.
;   waves 0-3 (a): LN(x) -> gelu(.. @ w1) -> [all-gather, shifted] -> @ w2 + xn -> [all-gather] -> centre
;                  wave, dual softmax, kv partial sums -> [two-step reduction] -> o
;   MLP: the two groups alternate matmul passes (weights straight from L2, activations from LDS) while the other
;        group runs the activation / stores bf16 partial sums; o @ wo rides along as extra k-steps; the eight partial
;        sums of a token tile are reduced in place (reduce-scatter) and x + x1 is added.
;   Hand-offs: write-through (sc1) stores, vmcnt wait, scalar atomic on a counter in d_ws; counters are cleared by one
"""
def write(path, **kw):
    body = gen(**kw)
    open(path, 'w').write(HDR + f"; cfg {kw}\n; @launch grid=(256,1,1) block=(512,1,1) lds={LDS_SIZE}\n" + DOC + '.amdgcn_target "amdgcn-amd-amdhsa--gfx950"\n.text\n' + body + '.section .rodata,"a"\n' + kernel_desc(KNAME))
if __name__ == '__main__':
    kw = {}
    for x in sys.argv[2:]:
        k, v = x.split('='); kw[k] = eval(v)
    write(sys.argv[1], **kw)
```
